```python
import torch

def _softmax(x, axis=-1):
    return torch.softmax(x, dim=axis)
def _gelu(x):
    return torch.nn.functional.gelu(x, approximate="tanh")
def _silu(x):
    return torch.nn.functional.silu(x)
def _sigmoid(x):
    return torch.sigmoid(x)
def _layernorm(x, axis=-1, eps=1e-5):
    m = x.mean(dim=axis, keepdim=True)
    v = x.var(dim=axis, keepdim=True, unbiased=False)
    return (x - m) / torch.sqrt(v + eps)
def _scatter_add(tgt, idx, src, axis=0):
    return tgt.clone().index_add_(axis, idx, src)
def _segment_sum(src, seg, n):
    out = torch.zeros((n,) + src.shape[1:], dtype=src.dtype)
    return out.index_add_(0, seg, src)
def _pad(x, pw):
    flat = tuple(v for pair in reversed(pw) for v in pair)
    return torch.nn.functional.pad(x, flat)

kernel_name = 'sequential_preLN__linear_kernel_hedgehog__glu_gated_bilinear__prompt'

def setup_inputs():

    _w = (lambda a: (lambda t: t.to(torch.bfloat16) if t.is_floating_point() else t)(torch.as_tensor(a)))
    def _A_setup():
        B, S, D, H = 1, 2048, 512, 32
        Dh = D // H
        return {
            "x": _w((lambda *s: torch.randn(*s, dtype=torch.bfloat16) * 0.05)(B, S, D)),
            "wqkv": _w((lambda *s: torch.randn(*s, dtype=torch.bfloat16) * 0.2)(D, 3 * D)),
            "w_phi": _w((lambda *s: torch.randn(*s, dtype=torch.bfloat16) * 0.2)(H, Dh, Dh) * (Dh ** -0.5)),
            "wo": _w((lambda *s: torch.randn(*s, dtype=torch.bfloat16) * 0.05)(D, D)),
        }
    _A_in = _A_setup()

    def _B_setup():
        B, S, D, F = 1, 2048, 512, 1376
        return {
            "x": _w((lambda *s: torch.randn(*s, dtype=torch.bfloat16) * 0.05)(B, S, D)),
            "w_gate": _w((lambda *s: torch.randn(*s, dtype=torch.bfloat16) * 0.4)(D, F) * (D ** -0.5)),
            "w_up": _w((lambda *s: torch.randn(*s, dtype=torch.bfloat16) * 0.4)(D, F) * (D ** -0.5)),
            "w_down": _w((lambda *s: torch.randn(*s, dtype=torch.bfloat16) * 0.4)(F, D) * (F ** -0.5)),
        }
    _B_in = _B_setup()

    return {
        "A_x": _A_in["x"],
        "A_wqkv": _A_in["wqkv"],
        "A_w_phi": _A_in["w_phi"],
        "A_wo": _A_in["wo"],
        "B_x": _B_in["x"],
        "B_w_gate": _B_in["w_gate"],
        "B_w_up": _B_in["w_up"],
        "B_w_down": _B_in["w_down"],
    }

def reference(A_x, A_wqkv, A_w_phi, A_wo, B_x, B_w_gate, B_w_up, B_w_down):
    def _A_ref(x, wqkv, w_phi, wo):
        B, S, D = x.shape
        H = 32; Dh = D // H
        qkv = (lambda x, *d: x.permute(*d))((x @ wqkv).reshape(B, S, 3, H, Dh), 2, 0, 3, 1, 4)
        q, k, v = qkv[0], qkv[1], qkv[2]
        pq = torch.einsum("bhsd,hdf->bhsf", q, w_phi)
        pk = torch.einsum("bhsd,hdf->bhsf", k, w_phi)
        phi_q = torch.concatenate([_softmax(pq, axis=-1), _softmax(-pq, axis=-1)], axis=-1)
        phi_k = torch.concatenate([_softmax(pk, axis=-1), _softmax(-pk, axis=-1)], axis=-1)
        kv = torch.einsum("bhsf,bhsd->bhfd", phi_k, v)
        z  = torch.einsum("bhsf->bhf", phi_k)
        num = torch.einsum("bhqf,bhfd->bhqd", phi_q, kv)
        den = torch.einsum("bhqf,bhf->bhq", phi_q, z)[..., None] + 1e-6
        o = num / den
        return (lambda x, *d: x.permute(*d))(o, 0, 2, 1, 3).reshape(B, S, D) @ wo

    def _B_ref(x, w_gate, w_up, w_down):
        g = torch.einsum("bsd,df->bsf", x, w_gate)
        u = torch.einsum("bsd,df->bsf", x, w_up)
        h = g * u
        return torch.einsum("bsf,fd->bsd", h, w_down)

    x = A_x
    h = x + _A_ref(_layernorm(x, axis=-1), A_wqkv, A_w_phi, A_wo)
    h2 = h + _B_ref(_layernorm(h, axis=-1), B_w_gate, B_w_up, B_w_down)
    return h2
```

```python
import re

REG = re.compile(r'^(-|abs\()?([vas])(\d+)\)?$')
RNG = re.compile(r'^(-)?([vas])\[(\d+):(\d+)\]$')
TRANS = ('v_exp_f32', 'v_log_f32', 'v_rcp_f32', 'v_rsq_f32', 'v_sqrt_f32', 'v_rcp_iflag_f32')


def regs(tok):
    tok = tok.strip()
    m = REG.match(tok)
    if m:
        return {(m.group(2), int(m.group(3)))}
    m = RNG.match(tok)
    if m:
        return {(m.group(2), i) for i in range(int(m.group(3)), int(m.group(4)) + 1)}
    if tok == 'vcc':
        return {('s', 106), ('s', 107)}
    if tok == 'vcc_lo':
        return {('s', 106)}
    if tok == 'vcc_hi':
        return {('s', 107)}
    if tok == 'exec':
        return {('s', 126), ('s', 127)}
    if tok == 'm0':
        return {('s', 124)}
    return set()


class Ins:
    __slots__ = ('text', 'op', 'kind', 'w', 'r', 'A', 'B', 'C', 'passes', 'lds', 'sdata', 'dpp', 'sdwa', 'tag')


def parse(text):
    t = text.split(';')[0].strip()
    sp = t.split(None, 1)
    op = sp[0]
    rest = sp[1] if len(sp) > 1 else ''
    rest2 = re.sub(r'\b(op_sel|op_sel_hi|neg_lo|neg_hi|quad_perm):\[[^\]]*\]', '', rest)
    toks = [x.strip() for x in rest2.split(',')] if rest2.strip() else []
    mods = []
    if toks:
        last = toks[-1].split()
        toks[-1] = last[0] if last else ''
        mods = last[1:]
    I = Ins()
    I.text = t; I.op = op; I.w = set(); I.r = set(); I.A = I.B = I.C = set(); I.passes = 0
    I.lds = False; I.sdata = set(); I.tag = None
    I.dpp = ('_dpp' in op) or any(m.startswith(('row_', 'quad_perm', 'wave_')) for m in rest.split())
    I.sdwa = ('_sdwa' in op) or ('op_sel:' in rest and not op.startswith('v_pk_'))
    R = [regs(x) for x in toks]
    if op.startswith('v_mfma'):
        I.kind = 'mfma'
        I.w = R[0]; I.A = R[1]; I.B = R[2]; I.C = R[3]
        I.r = R[1] | R[2] | R[3]
        I.passes = 8 if '32x32' in op else 4
    elif op.startswith('ds_'):
        I.kind = 'ds'
        if op.startswith(('ds_read', 'ds_bpermute', 'ds_permute', 'ds_swizzle')) or '_rtn' in op:
            I.w = R[0]
            for x in R[1:]: I.r |= x
        else:
            for x in R: I.r |= x
    elif op.startswith(('buffer_', 'global_')):
        I.kind = 'vm'
        if 'lds' in mods:
            I.lds = True
            for x in R: I.r |= x
            I.r |= regs('m0')
        elif 'load' in op:
            I.w = R[0]
            for x in R[1:]: I.r |= x
            if 'd16' in op: I.r |= R[0]
        elif 'atomic' in op and 'sc0' in mods:
            I.w = R[0]
            for x in R: I.r |= x
        else:
            for x in R: I.r |= x
            if 'x4' in op or 'x3' in op:
                I.sdata = R[0] if op.startswith('buffer') else R[1]
    elif op.startswith('v_'):
        I.kind = 'valu'
        if op.startswith('v_permlane') and 'swap' in op:
            I.w = R[0] | R[1]; I.r = R[0] | R[1]
        elif op.startswith('v_nop'):
            pass
        else:
            I.w = R[0]
            k = 1
            if op.startswith(('v_add_co', 'v_sub_co', 'v_addc_co', 'v_subb_co', 'v_div_scale', 'v_mad_u64')):
                I.w = I.w | R[1]; k = 2
            for x in R[k:]: I.r |= x
            if op.startswith(('v_fmac', 'v_dot2c', 'v_pk_fmac', 'v_writelane')) or I.sdwa or I.dpp:
                I.r |= R[0]
            if op.startswith('v_cndmask') and len(R) == 3:
                I.r |= regs('vcc')
            if op.startswith('v_cmpx'):
                I.w |= regs('exec')
            if op.startswith('v_dot2') and not op.startswith('v_dot2c'):
                I.C = R[3]; I.A = R[1]; I.B = R[2]
            if op.startswith('v_dot2c'):
                I.C = R[0]; I.A = R[1]; I.B = R[2]
    elif op.startswith(('s_load', 's_memrealtime', 's_memtime', 's_buffer_load')):
        I.kind = 'smem'
        I.w = R[0]
        for x in R[1:]: I.r |= x
    elif op.startswith('s_'):
        I.kind = 'salu'
        if op.startswith(('s_cmp', 's_cbranch', 's_branch', 's_waitcnt', 's_barrier', 's_nop', 's_endpgm', 's_setprio', 's_sleep', 's_bitcmp')):
            for x in R: I.r |= x
        else:
            I.w = R[0] if R else set()
            for x in R[1:]: I.r |= x
            if 'saveexec' in op:
                I.w = I.w | regs('exec')
    else:
        raise ValueError('unknown op ' + op)
    return I


class Prog:
    def __init__(self):
        self.lines = []
        self.uid = 0
        self.hist = []
        self.pos = 0
        self.lg = []
        self.vm = []
        self.smem = set()
        self.nops = 0
        self.stats = {}

    def raw(self, s):
        self.lines.append(s)

    def comment(self, s):
        self.lines.append('    ; ' + s)

    def newlabel(self, base='L'):
        self.uid += 1
        return f'{base}_{self.uid}'

    def label(self, name, pad=True):
        self.lines.append(name + ':')

    def text(self):
        return '\n'.join(self.lines) + '\n'

    def _out(self, t, states=1):
        self.lines.append('    ' + t)
        self.pos += states

    def nop(self, n):
        while n > 0:
            k = min(n, 16)
            self._out(f's_nop {k-1}', k)
            self.nops += k
            n -= k

    def _wait(self, vm=None, lg=None):
        parts = []
        if vm is not None:
            vm = min(vm, 63)
            if vm < len(self.vm):
                parts.append(f'vmcnt({vm})')
                self.vm = self.vm[len(self.vm) - vm:] if vm else []
        if lg is not None:
            lg = min(lg, 15)
            if lg < len(self.lg) or (lg == 0 and self.smem):
                parts.append(f'lgkmcnt({lg})')
                self.lg = self.lg[len(self.lg) - lg:] if lg else []
                if lg == 0: self.smem = set()
        if parts:
            self._out('s_waitcnt ' + ' '.join(parts))

    def wait_vm(self, tag=None):
        if tag is None:
            self._wait(vm=0); return
        tags = tag if isinstance(tag, (list, tuple, set)) else [tag]
        idx = [i for i, (d, t) in enumerate(self.vm) if t in tags]
        if idx:
            self._wait(vm=len(self.vm) - 1 - max(idx))

    def wait_lg(self, tag=None):
        if tag is None:
            self._wait(lg=0); return
        idx = [i for i, (d, t) in enumerate(self.lg) if t == tag]
        if idx:
            self._wait(lg=len(self.lg) - 1 - max(idx))

    def force_wait(self, s):
        self._out('s_waitcnt ' + s)
        if 'vmcnt(0)' in s: self.vm = []
        if 'lgkmcnt(0)' in s: self.lg = []; self.smem = set()

    def barrier(self):
        self('s_barrier')

    def snapshot(self):
        return (list(self.vm), list(self.lg), set(self.smem), list(self.hist), self.pos)

    def restore(self, s):
        self.vm, self.lg, self.smem = list(s[0]), list(s[1]), set(s[2])
        d = self.pos - s[4]
        self.hist = [(i, p + d) for i, p in s[3]]

    def __call__(self, s, tag=None):
        for l in s.strip('\n').split('\n'):
            l = l.strip()
            if l and not l.startswith(';'):
                self.emit(l, tag)

    def emit(self, text, tag=None):
        I = parse(text)
        touched = I.r | I.w
        need_vm = None
        for i, (d, t) in enumerate(self.vm):
            if d & touched:
                need_vm = len(self.vm) - 1 - i
        need_lg = None
        for i, (d, t) in enumerate(self.lg):
            if d & touched:
                need_lg = len(self.lg) - 1 - i
        if self.smem & touched:
            need_lg = 0
        if need_lg is not None and self.smem:
            need_lg = 0
        self._wait(vm=need_vm, lg=need_lg)
        need = 0
        isv = I.kind == 'valu'
        for P, p in self.hist:
            dist = self.pos - p - 1
            req = 0
            if P.kind == 'mfma':
                big = P.passes == 8
                if I.kind == 'mfma':
                    if P.w & (I.A | I.B): req = 12 if big else 8
                    elif P.w & I.C:
                        if not (P.w == I.C and P.passes == I.passes): req = 10 if big else 6
                    elif P.w & I.w: req = 12 if big else 8
                elif I.kind in ('valu', 'ds', 'vm'):
                    if P.w & touched: req = 12 if big else 8
                    if isv and (P.C & I.w): req = max(req, 7 if big else 3)
            elif P.kind == 'valu':
                pv = {x for x in P.w if x[0] != 's'}
                ps = {x for x in P.w if x[0] == 's'}
                dot = P.op.startswith('v_dot2')
                if I.kind == 'mfma':
                    if pv & I.r: req = 3 if dot else 2
                    if ps & regs('exec'): req = max(req, 4)
                if dot and (pv & touched):
                    if not (I.op == P.op and (pv & I.C) and not (pv & (I.A | I.B))):
                        req = max(req, 3)
                if isv:
                    if ps & I.r: req = max(req, 4 if I.op.startswith(('v_readlane', 'v_writelane', 'v_div_fmas')) else 2)
                    if (pv & I.r) and I.op.startswith(('v_readlane', 'v_readfirstlane')): req = max(req, 1)
                    if (pv & I.r) and (I.op.startswith('v_permlane') or I.dpp): req = max(req, 2)
                    if P.op.startswith(TRANS) and (pv & I.r): req = max(req, 1)
                    if P.sdwa and (pv & touched): req = max(req, 1)
                    if (ps & regs('exec')) and (I.dpp or I.op.startswith(('v_permlane', 'v_read'))): req = max(req, 5)
                if I.kind == 'vm' and (ps & I.r): req = max(req, 5)
                if I.op.startswith(('s_cbranch_vcc', 's_cbranch_exec')) and ps: req = max(req, 5)
            elif P.kind == 'salu':
                if I.kind == 'vm' and I.lds and (P.w & regs('m0')): req = 1
            elif P.kind == 'vm':
                if P.sdata & I.w: req = 2
            need = max(need, req - dist)
        if need > 0:
            self.nop(need)
        self.hist.append((I, self.pos))
        self._out(I.text, 1)
        if I.op == 's_nop':
            self.pos += int(I.text.split()[1], 0)
        self.hist = [(i, p) for i, p in self.hist if self.pos - p <= 20]
        if I.kind == 'ds':
            self.lg.append((I.w, tag))
        elif I.kind == 'vm':
            self.vm.append((I.w, tag))
        elif I.kind == 'smem':
            self.smem |= I.w
        self.stats[I.kind] = self.stats.get(I.kind, 0) + 1


def interleave(main, fillers, start=0, per=None):
    out = []
    n = len(main) - start
    k = 0
    for i, m in enumerate(main):
        out.append(m)
        if i >= start:
            want = len(fillers) * (i - start + 1) // n if per is None else min(len(fillers), per * (i - start + 1))
            while k < want:
                out.append(fillers[k]); k += 1
    out.extend(fillers[k:])
    return out
```

```python
import sys
sys.path.insert(0, 'gen')
from prog import *

NAME = 'sequential_preLN__linear_kernel_hedgehog__glu_gated_bilinear__prompt_kernel'
O_OFF = 0
H_OFF = 2 << 20
HH_OFF = 4 << 20
KV_OFF = 10 << 20
ST_OFF = 12 << 20
FL_OFF = 13 << 20
TS_OFF = 14 << 20
SX, SWQKV, SPHI, SWO, SWG, SWU, SWD, SOUT, SDBG, SWS = 28, 32, 36, 40, 44, 48, 52, 56, 60, 64
sW, sRB, sM, sG1, sRB1 = 68, 69, 70, 71, 72
sT = 92
LOG2E = 1.4426950408889634


def R(b, n=4, f='v'):
    return f'{f}[{b}:{b+n-1}]' if n > 1 else f'{f}{b}'


def srd(a, d, base, nbytes):
    a(f's_mov_b32 s{d}, s{base}')
    a(f's_and_b32 s{d+1}, s{base+1}, 0xffff')
    a(f's_mov_b32 s{d+2}, {nbytes}')
    a(f's_mov_b32 s{d+3}, 0x00020000')


def dma(a, voff, srd_, soff, lds, tag, flags=''):
    a(f's_mov_b32 m0, {lds}')
    a(f'buffer_load_dwordx4 v{voff}, s[{srd_}:{srd_+3}], {soff} offen {flags} lds', tag=tag)


class K:
    def __init__(self, ts=False, stop=99):
        self.a = Prog()
        self.ts = ts
        self.nts = 0
        self.stop = stop

    def stamp(self):
        if not self.ts:
            return
        a = self.a
        L = a.newlabel('TS')
        a('s_memrealtime s[100:101]')
        a(f's_cmp_lg_u32 s{sW}, 0')
        a(f's_cbranch_scc1 {L}')
        sn = a.snapshot()
        a('v_mov_b32 v126, s100')
        a(f's_lshl_b32 s101, s2, 8')
        a(f's_add_u32 s101, s101, {TS_OFF + 4*self.nts}')
        a('v_mov_b32 v127, 0')
        a(f'buffer_store_dword v126, v127, s[{SWS}:{SWS+3}], s101 offen')
        a.label(L)
        a.restore(sn)
        a.force_wait('lgkmcnt(0)')
        self.extra_vm()
        self.nts += 1

    def extra_vm(self):
        a = self.a
        pass

    def prologue(self):
        a = self.a
        a('s_cmp_ge_u32 s2, 256')
        a('s_cbranch_scc1 L_end')
        a('s_load_dwordx16 s[4:19], s[0:1], 0')
        a('s_load_dwordx4 s[20:23], s[0:1], 64')
        a('s_load_dwordx2 s[24:25], s[0:1], 80')
        a('v_lshrrev_b32 v1, 6, v0')
        a('v_and_b32 v0, 63, v0')
        a(f'v_readfirstlane_b32 s{sW}, v1')
        a(f's_and_b32 s{sT}, s2, 7')
        a(f's_lshr_b32 s{sT+1}, s2, 3')
        a(f's_and_b32 s{sRB}, s{sT+1}, 1')
        a(f's_lshl_b32 s{sT+2}, s{sT}, 1')
        a(f's_add_u32 s{sRB}, s{sRB}, s{sT+2}')
        a(f's_lshr_b32 s{sM}, s2, 4')
        a(f's_mov_b32 s{sRB1}, s{sRB}')
        a(f's_mov_b32 s{sG1}, s{sM}')
        srd(a, SX, 4, 2048 * 512 * 2)
        srd(a, SWQKV, 6, 512 * 1536 * 2)
        srd(a, SPHI, 8, 32 * 16 * 16 * 2)
        srd(a, SWO, 10, 512 * 512 * 2)
        srd(a, SWG, 14, 512 * 1376 * 2)
        srd(a, SWU, 16, 512 * 1376 * 2)
        srd(a, SWD, 18, 1376 * 512 * 2)
        srd(a, SOUT, 20, 2048 * 512 * 2)
        srd(a, SDBG, 22, 256)
        srd(a, SWS, 24, 268435456)
        L = a.newlabel('NON')
        a(f's_or_b32 s{sT}, s2, s{sW}')
        a(f's_cmp_lg_u32 s{sT}, 0')
        a(f's_cbranch_scc1 {L}')
        sn = a.snapshot()
        a('s_memrealtime s[74:75]')
        a('v_mov_b32 v1, 0')
        a('s_or_b32 s75, s75, 0x80000000')
        a('v_mov_b32 v2, s74')
        a('v_mov_b32 v3, s75')
        a('s_mov_b64 exec, 1')
        a(f'buffer_store_dwordx2 v[2:3], v1, s[{SDBG}:{SDBG+3}], 0 offen sc1')
        a('s_mov_b64 exec, -1')
        a.nop(2)
        a.label(L)
        a.restore(sn)

    def get_nonce(self):
        a = self.a
        L, P = a.newlabel('GN'), a.newlabel('GP')
        a(f's_cmp_lg_u32 s{sW}, 0')
        a(f's_cbranch_scc1 {L}')
        sn = a.snapshot()
        a(f's_mov_b32 s{sT}, 0')
        a('v_mov_b32 v123, 0')
        a.label(P)
        a(f'buffer_load_dwordx2 v[124:125], v123, s[{SDBG}:{SDBG+3}], 0 offen sc1')
        a.force_wait('vmcnt(0)')
        a('v_cmp_eq_u32 vcc, 0, v125')
        a(f's_add_u32 s{sT}, s{sT}, 1')
        a(f's_cmp_gt_u32 s{sT}, 400000')
        a(f's_cbranch_scc1 {L}')
        a(f's_cbranch_vccnz {P}')
        a.label(L)
        a.restore(sn)

    def publish(self, kind, sgroup, smember):
        a = self.a
        a.force_wait('vmcnt(0)')
        a.barrier()
        L = a.newlabel('PB')
        a(f's_cmp_lg_u32 s{sW}, 0')
        a(f's_cbranch_scc1 {L}')
        sn = a.snapshot()
        a(f's_lshl_b32 s{sT}, s{sgroup}, 7')
        a(f's_lshl_b32 s{sT+1}, s{smember}, 3')
        a(f's_add_u32 s{sT}, s{sT}, s{sT+1}')
        a(f's_add_u32 s{sT}, s{sT}, {FL_OFF + kind*2048}')
        a('v_mov_b32 v123, 0')
        a('s_mov_b64 exec, 1')
        a(f'buffer_store_dwordx2 v[124:125], v123, s[{SWS}:{SWS+3}], s{sT} offen sc1')
        a('s_mov_b64 exec, -1')
        a.label(L)
        a.restore(sn)

    def wait_flags(self, kind, sgroup, n=16):
        a = self.a
        L, P = a.newlabel('WF'), a.newlabel('WP')
        a(f's_cmp_lg_u32 s{sW}, 0')
        a(f's_cbranch_scc1 {L}')
        sn = a.snapshot()
        a(f's_lshl_b32 s{sT}, s{sgroup}, 7')
        a(f's_add_u32 s{sT}, s{sT}, {FL_OFF + kind*2048}')
        a('v_and_b32 v123, 15, v0')
        a(f'v_min_u32 v123, {n-1}, v123')
        a('v_lshlrev_b32 v123, 3, v123')
        a(f's_mov_b32 s{sT+1}, 0')
        a.label(P)
        a(f'buffer_load_dwordx2 v[120:121], v123, s[{SWS}:{SWS+3}], s{sT} offen sc1')
        a.force_wait('vmcnt(0)')
        a('v_cmp_ne_u64 vcc, v[120:121], v[124:125]')
        a(f's_add_u32 s{sT+1}, s{sT+1}, 1')
        a(f's_cmp_gt_u32 s{sT+1}, 400000')
        a(f's_cbranch_scc1 {L}')
        a(f's_cbranch_vccnz {P}')
        a.label(L)
        a.restore(sn)
        a.barrier()

    def ln_stats(self, vsum, vsq, vnegm, vrstd, t):
        a = self.a
        a(f'v_mul_f32 v{vsum}, {1.0/512}, v{vsum}')
        a(f'v_mul_f32 v{vsq}, {1.0/512}, v{vsq}')
        a(f'v_fma_f32 v{vsq}, -v{vsum}, v{vsum}, v{vsq}')
        a(f'v_max_f32 v{vsq}, 0, v{vsq}')
        a(f'v_cvt_pk_bf16_f32 v{vnegm}, v{vsum}, v{vsum}')
        a(f'v_cvt_pk_bf16_f32 v{vsq}, v{vsq}, v{vsq}')
        a(f'v_xor_b32 v{vnegm}, 0x80008000, v{vnegm}')
        a(f'v_and_b32 v{vsq}, 0xffff0000, v{vsq}')
        a(f'v_cmp_gt_u32 vcc, 32, v0')
        a(f'v_add_f32 v{vsq}, 0x3727c5ac, v{vsq}')
        a(f'v_cvt_pk_bf16_f32 v{vsq}, v{vsq}, v{vsq}')
        a(f'v_cndmask_b32 v{vnegm}, 0, v{vnegm}, vcc')
        a(f'v_and_b32 v{vsq}, 0xffff0000, v{vsq}')
        a(f'v_sqrt_f32 v{vsq}, v{vsq}')
        a(f'v_and_b32 v{vnegm+1}, 0xffff, v{vnegm}')
        a(f'v_cvt_pk_bf16_f32 v{vsq}, v{vsq}, v{vsq}')
        a(f'v_mov_b32 v{vnegm+2}, 0')
        a(f'v_and_b32 v{vsq}, 0xffff0000, v{vsq}')
        a(f'v_mov_b32 v{vnegm+3}, 0')
        a(f'v_rcp_f32 v{vrstd}, v{vsq}')

    def cs_frag(self, vcs, dst, t):
        a = self.a
        a(f'v_and_b32 v{t}, 0xffff0000, v{vcs}')
        a(f'v_sub_f32 v{t+1}, v{vcs}, v{t}')
        a(f'v_and_b32 v{dst}, 0xffff0000, v{t+1}')
        a(f'v_sub_f32 v{dst+1}, v{t+1}, v{dst}')
        a(f'v_lshrrev_b32 v{t}, 16, v{t}')
        a(f'v_or_b32 v{dst}, v{dst}, v{t}')
        a(f'v_lshrrev_b32 v{dst+1}, 16, v{dst+1}')
        a(f'v_mov_b32 v{dst+2}, 0')
        a(f'v_mov_b32 v{dst+3}, 0')

    def softmax(self, d, vc, out, t):
        a = self.a
        a(f'v_max3_f32 v{t}, v{d}, v{d+1}, v{d+2}')
        a(f'v_max3_f32 v{t+1}, v{d+3}, v{d+4}, v{d+5}')
        for i in (6, 10):
            a(f'v_max3_f32 v{t}, v{t}, v{d+i}, v{d+i+1}')
            a(f'v_max3_f32 v{t+1}, v{t+1}, v{d+i+2}, v{d+i+3}')
        a(f'v_max3_f32 v{t}, v{t}, v{d+14}, v{d+15}')
        a(f'v_max_f32 v{t}, v{t}, v{t+1}')
        a(f'v_mul_f32 v{t}, v{t}, v{vc}')
        for i in range(16):
            a(f'v_fma_f32 v{d+i}, v{d+i}, v{vc}, -v{t}')
        for i in range(16):
            a(f'v_exp_f32 v{d+i}, v{d+i}')
        a(f'v_pk_add_f32 v[{t}:{t+1}], v[{d}:{d+1}], v[{d+2}:{d+3}]')
        for i in range(4, 16, 2):
            a(f'v_pk_add_f32 v[{t}:{t+1}], v[{t}:{t+1}], v[{d+i}:{d+i+1}]')
        a(f'v_add_f32 v{t}, v{t}, v{t+1}')
        a(f'v_rcp_f32 v{t}, v{t}')
        a(f'v_mov_b32 v{t+1}, v{t}')
        for i in range(0, 16, 2):
            a(f'v_pk_mul_f32 v[{d+i}:{d+i+1}], v[{d+i}:{d+i+1}], v[{t}:{t+1}]')
        for i in range(8):
            a(f'v_cvt_pk_bf16_f32 v{out+i}, v{d+2*i}, v{d+2*i+1}')

    def p1(self):
        a = self.a
        X0, AK, AV, AQ, WB, PH = 128, 16, 32, 48, 64, 96
        vSUM, vSQ, vCK, vCV, vCQ, vONE = 104, 105, 106, 107, 108, 109
        vXE, vXO, vWD = 1, 2, 3
        vXR = 4
        vWR = 8
        WL = 65536
        a(f'v_lshrrev_b32 v110, 4, v0')
        a(f'v_and_b32 v111, 7, v0')
        a(f'v_xor_b32 v110, v110, v111')
        a(f'v_lshlrev_b32 v110, 4, v110')
        a(f'v_lshrrev_b32 v111, 3, v0')
        a(f'v_lshl_add_u32 v{vXE}, v111, 10, v110')
        a(f'v_xor_b32 v{vXO}, 64, v{vXE}')
        a(f'v_lshrrev_b32 v110, 2, v0')
        a(f'v_mul_u32_u24 v110, 3072, v110')
        a(f'v_and_b32 v111, 3, v0')
        a(f'v_lshl_add_u32 v{vWD}, v111, 4, v110')
        a(f's_lshl_b32 s{sT}, s{sRB1}, 17')
        a(f's_lshl_b32 s{sT+1}, s{sW}, 15')
        a(f's_add_u32 s{sT}, s{sT}, s{sT+1}')
        a(f's_lshl_b32 s{sT+1}, s{sG1}, 6')
        a(f's_add_u32 s{sT+2}, s{sRB1}, s{sG1}')
        for sl in range(8):
            a(f's_add_u32 s{sT+3}, s{sT+2}, {sl}')
            a(f's_and_b32 s{sT+3}, s{sT+3}, 7')
            a(f's_lshl_b32 s{76+sl}, s{sT+3}, 7')
            a(f's_add_u32 s{76+sl}, s{76+sl}, s{sT}')
            a(f's_mul_i32 s{84+sl}, s{sT+3}, {64*3072}')
            a(f's_add_u32 s{84+sl}, s{84+sl}, s{sT+1}')
        a(f's_lshl_b32 s{sT+4}, s{sW}, 14')

        def xdma(half):
            for sl in range(4):
                for q in range(4):
                    a(f's_add_u32 s{sT+5}, s{76+4*half+sl}, {q*8192}')
                    a(f's_add_u32 s{sT+6}, s{sT+4}, {(sl*4+q)*1024}')
                    dma(a, vXO if q & 1 else vXE, SX, f's{sT+5}', f's{sT+6}', f'x{half}_{sl}')
        a(f's_mul_i32 s{sT+7}, s{sW}, {16*3072}')
        a(f's_mul_i32 s73, s{sW}, 3072')
        a(f's_add_u32 s73, s73, {WL}')

        def wdma(sl, m, tag):
            moff = (1024, 2048, 0)[m]
            a(f's_add_u32 s{sT+5}, s{84+sl}, s{sT+7}')
            if moff:
                a(f's_add_u32 s{sT+5}, s{sT+5}, {moff}')
            a(f's_add_u32 s{sT+6}, s73, {sl*4*3072 + m*1024}')
            dma(a, vWD, SWQKV, f's{sT+5}', f's{sT+6}', tag)
        xdma(0)
        for sl in range(8):
            wdma(sl, 0, f'w{sl}')
            wdma(sl, 1, f'w{sl}')
        a(f'v_and_b32 v110, 31, v0')
        a(f'v_lshrrev_b32 v111, 1, v110')
        a(f'v_and_b32 v111, 7, v111')
        a(f'v_lshrrev_b32 v112, 5, v0')
        a(f'v_xor_b32 v111, v111, v112')
        a(f'v_lshlrev_b32 v111, 4, v111')
        a(f'v_lshl_add_u32 v111, v110, 7, v111')
        a(f'v_add_u32 v111, s{sT+4}, v111')
        a(f'v_lshrrev_b32 v113, 5, v0')
        a(f'v_lshlrev_b32 v113, 9, v113')
        a(f'v_bfe_u32 v114, v0, 2, 2')
        a(f'v_lshl_add_u32 v113, v114, 6, v113')
        a(f'v_bfe_u32 v114, v0, 4, 1')
        a(f'v_lshl_add_u32 v113, v114, 5, v113')
        a(f'v_and_b32 v114, 3, v0')
        a(f'v_lshl_add_u32 v113, v114, 3, v113')
        for i in range(4):
            a(f's_add_u32 s{sT+5}, s{sW}, {i}')
            a(f's_and_b32 s{sT+5}, s{sT+5}, 3')
            a(f's_lshl_b32 s{sT+6}, s{sT+5}, 5')
            a(f'v_xor_b32 v{vXR+i}, s{sT+6}, v111')
            a(f's_mul_i32 s{sT+6}, s{sT+5}, 3072')
            a(f's_add_u32 s{sT+6}, s{sT+6}, {WL}')
            a(f'v_add_u32 v{vWR+i}, s{sT+6}, v113')
            a(f'v_add_u32 v{vWR+4+i}, {16*3072}, v{vWR+i}')
        a(f'v_mov_b32 v{vONE}, 0x3f803f80')
        for r in (vSUM, vSQ, vCK, vCV, vCQ):
            a(f'v_mov_b32 v{r}, 0')

        def xread(half):
            for sl in range(4):
                a.wait_vm(f'x{half}_{sl}')
                for i in range(4):
                    a(f'ds_read_b128 {R(X0 + (half*16 + sl*4 + i)*4)}, v{vXR+i} offset:{sl*4096}')

        def wfrag(tl, m, dst):
            base = vWR + (4 if tl >= 16 else 0) + (tl & 3)
            off = ((tl & 15) >> 2) * 4 * 3072 + m * 1024
            return [f'ds_read_b64_tr_b16 v[{dst}:{dst+1}], v{base} offset:{off}',
                    f'ds_read_b64_tr_b16 v[{dst+2}:{dst+3}], v{base} offset:{off+256}']

        def stats(tl):
            o = []
            for j in range(4):
                x = X0 + tl * 4 + j
                o.append(f'v_dot2c_f32_bf16 v{vSUM}, v{x}, v{vONE}')
                o.append(f'v_dot2c_f32_bf16 v{vSQ}, v{x}, v{x}')
            return o
        xread(0)
        a.wait_lg()
        xdma(1)
        for sl in range(8):
            wdma(sl, 2, 'wq')
        a(f'v_and_b32 v110, 3, v0')
        a(f'v_bfe_u32 v111, v0, 3, 2')
        a(f'v_lshl_add_u32 v110, v111, 2, v110')
        a(f'v_lshlrev_b32 v110, 1, v110')
        a(f'v_lshrrev_b32 v111, 5, v0')
        a(f'v_lshl_add_u32 v110, v111, 7, v110')
        a(f's_lshl_b32 s{sT+5}, s{sG1}, 10')
        for t in range(2):
            for j in range(8):
                d = (j & 3) + 8 * (j >> 2)
                a(f'buffer_load_ushort v{AQ + t*8 + j}, v110, s[{SPHI}:{SPHI+3}], s{sT+5} offen offset:{t*512 + d*32}')
        NB = 4
        def buf(tl, m):
            return WB + ((tl % NB) * 2 + m) * 4
        for ch in range(4):
            if ch == 2:
                xread(1)
                a.wait_lg()
            a.wait_vm([f'w{2*ch}', f'w{2*ch+1}'])
            a.barrier()
            t0 = ch * 8
            for tl in range(t0, t0 + 2):
                for m in range(2):
                    for s in wfrag(tl, m, buf(tl, m)): a(s)
            for tl in range(t0, t0 + 8):
                fill = []
                if tl + 2 < t0 + 8:
                    for m in range(2): fill += wfrag(tl + 2, m, buf(tl + 2, m))
                st = stats(tl)
                c0 = '0' if tl == 0 else None
                a(f'v_mfma_f32_32x32x16_bf16 {R(AK,16)}, {R(buf(tl,0))}, {R(X0+tl*4)}, {c0 or R(AK,16)}')
                for s in fill[:2] + st[:4]: a(s)
                if tl & 3 == 0:
                    for j in range(4): a(f'v_dot2c_f32_bf16 v{vCK}, v{buf(tl,0)+j}, v{vONE}')
                a(f'v_mfma_f32_32x32x16_bf16 {R(AV,16)}, {R(buf(tl,1))}, {R(X0+tl*4)}, {c0 or R(AV,16)}')
                for s in fill[2:] + st[4:]: a(s)
                if tl & 3 == 0:
                    for j in range(4): a(f'v_dot2c_f32_bf16 v{vCV}, v{buf(tl,1)+j}, v{vONE}')
        self.stamp()
        vNM, vRS, vC2 = 112, 116, 117
        a(f'v_permlane32_swap_b32 v{vCK}, v{vCV}')
        a(f'v_add_f32 v{vCK}, v{vCK}, v{vCV}')
        a(f's_lshl_b32 s{sT}, s{sW}, 8')
        a(f'v_lshl_add_u32 v110, v0, 2, s{sT}')
        a(f'ds_write_b32 v110, v{vCK}')
        a(f'v_mov_b32 v118, v{vSUM}')
        a(f'v_mov_b32 v119, v{vSQ}')
        a(f'v_permlane32_swap_b32 v{vSUM}, v118')
        a(f'v_permlane32_swap_b32 v{vSQ}, v119')
        a(f'v_add_f32 v{vSUM}, v{vSUM}, v118')
        a(f'v_add_f32 v{vSQ}, v{vSQ}, v119')
        a.wait_lg()
        a.barrier()
        a(f'v_and_b32 v111, 31, v0')
        a(f'v_lshlrev_b32 v111, 2, v111')
        for w in range(4):
            a(f'ds_read2_b32 v[{WB+2*w}:{WB+2*w+1}], v111 offset0:{w*64} offset1:{w*64+32}')
        self.ln_stats(vSUM, vSQ, vNM, vRS, 118)
        a(f'v_mul_f32 v{vC2}, {LOG2E}, v{vRS}')
        a(f'v_pk_add_f32 v[{WB}:{WB+1}], v[{WB}:{WB+1}], v[{WB+2}:{WB+3}]')
        a(f'v_pk_add_f32 v[{WB+4}:{WB+5}], v[{WB+4}:{WB+5}], v[{WB+6}:{WB+7}]')
        a(f'v_pk_add_f32 v[{WB}:{WB+1}], v[{WB}:{WB+1}], v[{WB+4}:{WB+5}]')
        self.cs_frag(WB, WB + 8, 118)
        a(f'v_mfma_f32_32x32x16_bf16 {R(AK,16)}, {R(WB+8)}, {R(vNM)}, {R(AK,16)}')
        self.cs_frag(WB + 1, WB + 12, 118)
        a(f'v_mfma_f32_32x32x16_bf16 {R(AV,16)}, {R(WB+12)}, {R(vNM)}, {R(AV,16)}')
        a(f'v_bfe_u32 v110, v0, 2, 1')
        a(f'v_mul_u32_u24 v110, 0x8000, v110')
        a(f'v_lshl_add_u32 v110, v110, 16, v110')
        for j in range(8):
            a(f'v_lshl_or_b32 v{PH+j}, v{AQ+2*j+1}, 16, v{AQ+2*j}')
            a(f'v_xor_b32 v{PH+j}, v110, v{PH+j}')
        PHL, VVL = 4096, 4096 + 16384
        a(f'v_and_b32 v110, 7, v0')
        a(f'v_lshrrev_b32 v111, 1, v0')
        a(f'v_and_b32 v111, 4, v111')
        a(f'v_xor_b32 v110, v110, v111')
        a(f'v_lshrrev_b32 v111, 5, v0')
        a(f'v_lshlrev_b32 v111, 1, v111')
        a(f'v_xor_b32 v110, v110, v111')
        a(f'v_lshlrev_b32 v110, 4, v110')
        a(f'v_and_b32 v111, 31, v0')
        a(f'v_lshl_add_u32 v110, v111, 7, v110')
        a(f's_lshl_b32 s{sT}, s{sW}, 12')
        a(f's_add_u32 s{sT}, s{sT}, {PHL}')
        a(f'v_add_u32 v{vXE}, s{sT}, v110')
        a(f'v_bfe_u32 v110, v0, 1, 2')
        a(f'v_bfe_u32 v118, v0, 3, 1')
        a(f'v_xor_b32 v110, v110, v118')
        a(f'v_lshrrev_b32 v118, 5, v0')
        a(f'v_lshlrev_b32 v118, 1, v118')
        a(f'v_xor_b32 v110, v110, v118')
        a(f'v_lshlrev_b32 v110, 4, v110')
        a(f'v_lshl_add_u32 v110, v111, 6, v110')
        a(f's_lshl_b32 s{sT}, s{sW}, 11')
        a(f's_add_u32 s{sT}, s{sT}, {VVL}')
        a(f'v_add_u32 v{vXO}, s{sT}, v110')
        for i in range(8):
            a(f'v_cvt_pk_bf16_f32 v{AK+i}, v{AK+2*i}, v{AK+2*i+1}')
        for t in range(2):
            a(f'v_mfma_f32_32x32x16_bf16 {R(WB+16*t,16)}, {R(PH+4*t)}, {R(AK+4*t)}, 0')
        a(f'v_mov_b32 v118, v{vRS}')
        a(f'v_mov_b32 v119, v{vRS}')
        for i in range(8):
            a(f'v_pk_mul_f32 v[{AV+2*i}:{AV+2*i+1}], v[{AV+2*i}:{AV+2*i+1}], v[118:119]')
        for i in range(8):
            a(f'v_cvt_pk_bf16_f32 v{AV+i}, v{AV+2*i}, v{AV+2*i+1}')
        a(f'v_xor_b32 v110, 16, v{vXO}')
        a(f'ds_write_b128 v{vXO}, {R(AV)}')
        a(f'ds_write_b128 v110, {R(AV+4)}')
        for t in range(2):
            self.softmax(WB + 16 * t, vC2, AK + 8 * t, 118)
            a(f'v_xor_b32 v110, {64*t}, v{vXE}')
            a(f'v_xor_b32 v111, {64*t+16}, v{vXE}')
            a(f'ds_write_b128 v110, {R(AK+8*t)}')
            a(f'ds_write_b128 v111, {R(AK+8*t+4)}')
        a(f's_and_b32 s{sT}, s{sW}, 1')
        a(f's_lshr_b32 s{sT+1}, s{sW}, 1')
        a(f's_lshl_b32 s{sT+2}, s{sT}, 2')
        a(f's_lshl_b32 s{sT+3}, s{sT+1}, 1')
        a(f's_add_u32 s{sT+2}, s{sT+2}, s{sT+3}')
        a(f'v_bfe_u32 v110, v0, 1, 1')
        a(f'v_bfe_u32 v111, v0, 2, 2')
        a(f'v_xor_b32 v110, v110, v111')
        a(f'v_bfe_u32 v118, v0, 4, 1')
        a(f'v_lshlrev_b32 v118, 2, v118')
        a(f'v_xor_b32 v110, v110, v118')
        a(f'v_xor_b32 v110, s{sT+2}, v110')
        a(f'v_lshlrev_b32 v110, 4, v110')
        a(f'v_and_b32 v118, 1, v0')
        a(f'v_lshl_add_u32 v110, v118, 3, v110')
        a(f'v_lshrrev_b32 v118, 4, v0')
        a(f'v_lshl_add_u32 v118, v118, 3, v111')
        a(f'v_lshl_add_u32 v110, v118, 7, v110')
        a(f'v_add_u32 v{vXR}, {PHL}, v110')
        a(f'v_xor_b32 v110, 64, v110')
        a(f'v_add_u32 v{vXR+1}, {PHL+512}, v110')
        a(f'v_and_b32 v110, 1, v0')
        a(f'v_lshlrev_b32 v110, 1, v110')
        a(f'v_bfe_u32 v111, v0, 3, 1')
        a(f'v_xor_b32 v110, v110, v111')
        a(f'v_bfe_u32 v111, v0, 4, 1')
        a(f'v_xor_b32 v110, v110, v111')
        a(f'v_xor_b32 v110, s{sT}, v110')
        a(f'v_lshlrev_b32 v110, 4, v110')
        a(f'v_bfe_u32 v111, v0, 1, 1')
        a(f'v_lshl_add_u32 v110, v111, 3, v110')
        a(f'v_lshl_add_u32 v110, v118, 6, v110')
        a(f'v_add_u32 v{vXR+2}, {VVL}, v110')
        a(f'v_xor_b32 v110, 32, v110')
        a(f'v_add_u32 v{vXR+3}, {VVL+256}, v110')
        for j in range(4):
            a(f'v_mov_b32 v{AV+8+j}, v{vONE}')
        a(f'v_and_b32 v110, 15, v0')
        a(f'v_lshrrev_b32 v111, 4, v0')
        a(f'v_lshlrev_b32 v111, 4, v111')
        a(f'v_cmp_eq_u32 vcc, 0, v110')
        a(f'v_lshl_add_u32 v110, v110, 7, v111')
        a(f'v_add_u32 v111, 2048, v111')
        a(f'v_mov_b32 v118, 0x10000000')
        a(f'v_cndmask_b32 v111, v118, v111, vcc')
        a(f's_lshl_b32 s{sT+2}, s{sG1}, 4')
        a(f's_add_u32 s{sT+2}, s{sT+2}, s{sRB1}')
        a(f's_mul_i32 s{sT+2}, s{sT+2}, 4352')
        a(f's_mul_i32 s{sT}, s{sT}, 2176')
        a(f's_add_u32 s{sT+2}, s{sT+2}, s{sT}')
        a(f's_lshl_b32 s{sT+1}, s{sT+1}, 6')
        a(f's_add_u32 s{sT+2}, s{sT+2}, s{sT+1}')
        a(f's_add_u32 s{sT+2}, s{sT+2}, {KV_OFF}')
        a.wait_lg()
        a.barrier()
        for ks in range(4):
            b = WB + ks * 8
            a(f'ds_read_b64_tr_b16 v[{b}:{b+1}], v{vXR} offset:{ks*4096}')
            a(f'ds_read_b64_tr_b16 v[{b+2}:{b+3}], v{vXR+1} offset:{ks*4096}')
            a(f'ds_read_b64_tr_b16 v[{b+4}:{b+5}], v{vXR+2} offset:{ks*2048}')
            a(f'ds_read_b64_tr_b16 v[{b+6}:{b+7}], v{vXR+3} offset:{ks*2048}')
        for ks in range(4):
            b = WB + ks * 8
            a(f'v_mfma_f32_16x16x32_bf16 {R(AV)}, {R(b)}, {R(b+4)}, {"0" if ks == 0 else R(AV)}')
            a(f'v_mfma_f32_16x16x32_bf16 {R(AV+4)}, {R(b)}, {R(AV+8)}, {"0" if ks == 0 else R(AV+4)}')
        a(f'buffer_store_dwordx4 {R(AV)}, v110, s[{SWS}:{SWS+3}], s{sT+2} offen sc1')
        a(f'buffer_store_dwordx4 {R(AV+4)}, v111, s[{SWS}:{SWS+3}], s{sT+2} offen sc1')
        self.get_nonce()
        self.publish(0, sG1, sRB1)
        self.stamp()
        def qbuf(tl): return WB + (tl % 8) * 4
        for tl in range(4):
            for s in wfrag(tl, 2, qbuf(tl)): a(s)
        for tl in range(32):
            a(f'v_mfma_f32_32x32x16_bf16 {R(AQ,16)}, {R(qbuf(tl))}, {R(X0+tl*4)}, {"0" if tl == 0 else R(AQ,16)}')
            if tl + 4 < 32:
                for s in wfrag(tl + 4, 2, qbuf(tl + 4)): a(s)
            if tl & 3 == 0:
                for j in range(4): a(f'v_dot2c_f32_bf16 v{vCQ}, v{qbuf(tl)+j}, v{vONE}')
        a(f's_lshl_b32 s{sT}, s{sW}, 8')
        a(f'v_lshl_add_u32 v110, v0, 2, s{sT}')
        a(f'ds_write_b32 v110, v{vCQ} offset:1024')
        a(f'v_and_b32 v111, 31, v0')
        a(f'v_lshlrev_b32 v111, 2, v111')
        a(f'v_add_u32 v111, 1024, v111')
        a.wait_lg()
        a.barrier()
        for w in range(4):
            a(f'ds_read2_b32 v[{WB+2*w}:{WB+2*w+1}], v111 offset0:{w*64} offset1:{w*64+32}')
        a(f'v_pk_add_f32 v[{WB}:{WB+1}], v[{WB}:{WB+1}], v[{WB+2}:{WB+3}]')
        a(f'v_pk_add_f32 v[{WB+4}:{WB+5}], v[{WB+4}:{WB+5}], v[{WB+6}:{WB+7}]')
        a(f'v_pk_add_f32 v[{WB}:{WB+1}], v[{WB}:{WB+1}], v[{WB+4}:{WB+5}]')
        a(f'v_add_f32 v{WB}, v{WB}, v{WB+1}')
        self.cs_frag(WB, WB + 8, 118)
        a(f'v_mfma_f32_32x32x16_bf16 {R(AQ,16)}, {R(WB+8)}, {R(vNM)}, {R(AQ,16)}')
        self.prefetch_p2()
        for i in range(8):
            a(f'v_cvt_pk_bf16_f32 v{AQ+i}, v{AQ+2*i}, v{AQ+2*i+1}')
        for t in range(2):
            a(f'v_mfma_f32_32x32x16_bf16 {R(WB+16*t,16)}, {R(PH+4*t)}, {R(AQ+4*t)}, 0')
        for t in range(2):
            self.softmax(WB + 16 * t, vC2, AK + 8 * t, 118)
        a(f's_lshl_b32 s{sT+2}, s{sW}, 6')
        a(f'v_add_u32 v110, s{sT+2}, v0')
        a(f'v_lshrrev_b32 v111, 7, v110')
        a(f'v_and_b32 v110, 127, v110')
        a(f'v_mul_u32_u24 v{vXE}, 2176, v111')
        a(f'v_lshl_add_u32 v{vXE}, v110, 4, v{vXE}')
        KVB = 2048
        a(f'v_mul_u32_u24 v{vXR}, 1088, v111')
        a(f'v_lshl_add_u32 v{vXR}, v110, 3, v{vXR}')
        a(f's_lshl_b32 s{sT+2}, s{sW}, 2')
        a(f'v_lshrrev_b32 v110, 4, v0')
        a(f'v_add_u32 v110, s{sT+2}, v110')
        a(f'v_lshrrev_b32 v111, 3, v110')
        a(f'v_and_b32 v110, 7, v110')
        a(f'v_mul_u32_u24 v{vXO}, 2176, v111')
        a(f'v_lshl_add_u32 v{vXO}, v110, 4, v{vXO}')
        a(f'v_and_b32 v118, 15, v0')
        a(f'v_mul_u32_u24 v118, 4352, v118')
        a(f'v_add_u32 v{vXO}, v{vXO}, v118')
        a(f'v_mul_u32_u24 v{vXR+1}, 1088, v111')
        a(f'v_lshl_add_u32 v{vXR+1}, v110, 3, v{vXR+1}')
        a(f'v_and_b32 v110, 3, v0')
        a(f'v_bfe_u32 v111, v0, 2, 1')
        a(f'v_lshl_add_u32 v110, v111, 3, v110')
        a(f'v_bfe_u32 v111, v0, 4, 1')
        a(f'v_lshl_add_u32 v110, v111, 2, v110')
        a(f'v_and_b32 v111, 8, v0')
        a(f'v_cmp_eq_u32 vcc, 0, v111')
        a(f'v_lshrrev_b32 v111, 5, v0')
        a(f'v_lshlrev_b32 v111, 5, v111')
        a(f'v_cndmask_b32 v110, 16, v110, vcc')
        a(f'v_lshl_add_u32 v{vXR+2}, v110, 6, v111')
        a(f'v_lshlrev_b32 v{vXR+3}, 4, v0')
        self.stamp()
        self.wait_flags(0, sG1)
        self.stamp()
        a(f's_mul_i32 s{sT+2}, s{sG1}, {16*4352}')
        a(f's_add_u32 s{sT+2}, s{sT+2}, {KV_OFF}')
        a(f'buffer_load_dwordx4 {R(X0+64)}, v{vXO}, s[{SWS}:{SWS+3}], s{sT+2} offen offset:2048 sc1')
        for p in range(16):
            a(f'buffer_load_dwordx4 {R(X0+4*p)}, v{vXE}, s[{SWS}:{SWS+3}], s{sT+2} offen sc1')
            if p < 15:
                a(f's_add_u32 s{sT+2}, s{sT+2}, 4352')
        Z = X0 + 64
        for sh in (8, 4, 2, 1):
            for j in range(4):
                a(f'v_add_f32_dpp v{Z+j}, v{Z+j}, v{Z+j} row_ror:{sh} row_mask:0xf bank_mask:0xf')
        a(f'v_cvt_pk_bf16_f32 v{Z}, v{Z}, v{Z+1}')
        a(f'v_cvt_pk_bf16_f32 v{Z+1}, v{Z+2}, v{Z+3}')
        a(f'ds_write_b64 v{vXR+1}, v[{Z}:{Z+1}] offset:{KVB+1024}')
        for p in range(1, 16):
            a(f'v_pk_add_f32 v[{X0}:{X0+1}], v[{X0}:{X0+1}], v[{X0+4*p}:{X0+4*p+1}]')
            a(f'v_pk_add_f32 v[{X0+2}:{X0+3}], v[{X0+2}:{X0+3}], v[{X0+4*p+2}:{X0+4*p+3}]')
        a(f'v_cvt_pk_bf16_f32 v{X0}, v{X0}, v{X0+1}')
        a(f'v_cvt_pk_bf16_f32 v{X0+1}, v{X0+2}, v{X0+3}')
        a(f'ds_write_b64 v{vXR}, v[{X0}:{X0+1}] offset:{KVB}')
        a.wait_lg()
        a.barrier()
        for t in range(2):
            for u in range(2):
                a(f'ds_read_b128 {R(AV+8*t+4*u)}, v{vXR+2} offset:{KVB + t*1088 + u*16}')
        a(f's_lshl_b32 s{sT+2}, s{sRB1}, 2')
        a(f's_add_u32 s{sT+2}, s{sT+2}, s{sW}')
        a(f's_lshl_b32 s{sT+2}, s{sT+2}, 15')
        a(f's_lshl_b32 s{sT+3}, s{sG1}, 11')
        a(f's_add_u32 s{sT+2}, s{sT+2}, s{sT+3}')
        if O_OFF:
            a(f's_add_u32 s{sT+2}, s{sT+2}, {O_OFF}')
        for t in range(2):
            a(f'v_mfma_f32_32x32x16_bf16 {R(WB+16*t,16)}, {R(AV+8*t)}, {R(AK+8*t)}, 0')
            a(f'v_mfma_f32_32x32x16_bf16 {R(WB+16*t,16)}, {R(AV+8*t+4)}, {R(AK+8*t+4)}, {R(WB+16*t,16)}')
        for t in range(2):
            D = WB + 16 * t
            a(f'v_add_f32 v{D+4}, 0x358637bd, v{D+4}')
            a(f'v_rcp_f32 v{D+4}, v{D+4}')
            a(f'v_mov_b32 v{D+5}, v{D+4}')
            for r in (0, 2, 8, 10):
                a(f'v_pk_mul_f32 v[{D+r}:{D+r+1}], v[{D+r}:{D+r+1}], v[{D+4}:{D+5}]')
            for jj, r in enumerate((0, 2, 8, 10)):
                a(f'v_cvt_pk_bf16_f32 v{D+12+jj}, v{D+r}, v{D+r+1}')
            a(f'buffer_store_dwordx4 {R(D+12)}, v{vXR+3}, s[{SWS}:{SWS+3}], s{sT+2} offen offset:{t*1024} sc1')
        self.publish(1, sRB1, sG1)
        self.stamp()

    WO_L = 65536

    def w128_voff(self, v, t):
        a = self.a
        a(f'v_bfe_u32 v{t}, v0, 4, 1')
        a(f'v_lshlrev_b32 v{t}, 2, v{t}')
        a(f'v_and_b32 v{v}, 7, v0')
        a(f'v_xor_b32 v{v}, v{v}, v{t}')
        a(f'v_lshlrev_b32 v{v}, 4, v{v}')
        a(f'v_lshrrev_b32 v{t}, 3, v0')
        a(f'v_lshl_add_u32 v{v}, v{t}, 10, v{v}')

    def prefetch_p2(self):
        a = self.a
        self.w128_voff(3, 110)
        a(f's_and_b32 s{sT}, s{sM}, 7')
        a(f's_lshl_b32 s{sT}, s{sT}, 7')
        a(f's_lshl_b32 s{sT+1}, s{sW}, 13')
        a(f's_add_u32 s{sT+1}, s{sT+1}, s{sT}')
        a(f's_lshl_b32 s{sT+2}, s{sW}, 10')
        for n in range(16):
            a(f's_add_u32 s{sT+5}, s{sT+1}, {n*4*8192}')
            a(f's_add_u32 s{sT+6}, s{sT+2}, {self.WO_L + n*4096}')
            dma(a, 3, SWO, f's{sT+5}', f's{sT+6}', 'wo')
        self.tile_off()
        a(f'buffer_load_dwordx4 a[240:243], v110, s[{SX}:{SX+3}], s{sT+3} offen')
        a(f'buffer_load_dwordx4 a[244:247], v110, s[{SX}:{SX+3}], s{sT+3} offen offset:32')

    def tile_off(self):
        a = self.a
        a(f'v_and_b32 v110, 31, v0')
        a(f'v_lshlrev_b32 v110, 10, v110')
        a(f'v_lshrrev_b32 v111, 5, v0')
        a(f'v_lshl_add_u32 v110, v111, 4, v110')
        a(f's_lshr_b32 s{sT+3}, s{sM}, 3')
        a(f's_lshl_b32 s{sT+4}, s{sRB}, 1')
        a(f's_add_u32 s{sT+3}, s{sT+3}, s{sT+4}')
        a(f's_lshl_b32 s{sT+3}, s{sT+3}, 1')
        a(f's_and_b32 s{sT+4}, s{sW}, 1')
        a(f's_add_u32 s{sT+3}, s{sT+3}, s{sT+4}')
        a(f's_mov_b32 s76, s{sT+3}')
        a(f's_lshl_b32 s{sT+3}, s{sT+3}, 15')
        a(f's_and_b32 s{sT+4}, s{sM}, 7')
        a(f's_lshl_b32 s{sT+4}, s{sT+4}, 1')
        a(f's_lshr_b32 s{sT+5}, s{sW}, 1')
        a(f's_add_u32 s{sT+4}, s{sT+4}, s{sT+5}')
        a(f's_mov_b32 s77, s{sT+4}')
        a(f's_lshl_b32 s{sT+4}, s{sT+4}, 6')
        a(f's_add_u32 s{sT+3}, s{sT+3}, s{sT+4}')

    def w128_raddr(self, v, perm, sbase):
        a = self.a
        a(f'v_bfe_u32 v110, v0, 3, 1')
        a(f'v_lshlrev_b32 v110, 2, v110')
        a(f'v_bfe_u32 v111, v0, 4, 1')
        a(f'v_lshl_add_u32 v110, v111, 1, v110')
        a(f'v_bfe_u32 v111, v0, 1, 1')
        a(f'v_add_u32 v110, v110, v111')
        a(f'v_lshlrev_b32 v110, 4, v110')
        a(f'v_and_b32 v111, 1, v0')
        a(f'v_lshl_add_u32 v110, v111, 3, v110')
        a(f'v_bfe_u32 v111, v0, 2, 2')
        a(f'v_lshl_add_u32 v110, v111, 7, v110')
        a(f'v_lshrrev_b32 v111, 5, v0')
        a(f'v_lshl_add_u32 v110, v111, {9 if perm else 10}, v110')
        a(f'v_add_u32 v{v}, {sbase}, v110')
        a(f'v_xor_b32 v110, 64, v110')
        a(f'v_add_u32 v{v+1}, {sbase}, v110')

    def pair_reduce(self, A0, A1, T, lds):
        a = self.a
        L1, L2 = a.newlabel('PR'), a.newlabel('PR')
        a(f's_xor_b32 s{sT}, s{sW}, 2')
        a(f's_lshl_b32 s{sT}, s{sT}, 12')
        a(f's_add_u32 s{sT}, s{sT}, {lds}')
        a(f'v_lshl_add_u32 v110, v0, 4, s{sT}')
        a(f's_lshl_b32 s{sT}, s{sW}, 12')
        a(f's_add_u32 s{sT}, s{sT}, {lds}')
        a(f'v_lshl_add_u32 v111, v0, 4, s{sT}')
        a.nop(12)
        a(f's_cmp_ge_u32 s{sW}, 2')
        a(f's_cbranch_scc1 {L1}')
        sn = a.snapshot()
        for j in range(4):
            a(f'ds_write_b128 v110, {R(A1+4*j)} offset:{j*1024}')
        a(f's_branch {L2}')
        a.label(L1)
        a.restore(sn)
        for j in range(4):
            a(f'ds_write_b128 v110, {R(A0+4*j)} offset:{j*1024}')
        for j in range(16):
            a(f'v_mov_b32 v{A0+j}, v{A1+j}')
        a.label(L2)
        a.force_wait('lgkmcnt(0)')
        a.barrier()
        for j in range(4):
            a(f'ds_read_b128 {R(T+4*j)}, v111 offset:{j*1024}')
        for j in range(0, 16, 2):
            a(f'v_pk_add_f32 v[{A0+j}:{A0+j+1}], v[{A0+j}:{A0+j+1}], v[{T+j}:{T+j+1}]')

    def p2(self):
        a = self.a
        A0, A1, WB, XA = 16, 32, 64, 176
        vL16, vRA = 1, 4
        a(f'v_lshlrev_b32 v{vL16}, 4, v0')
        a(f's_lshr_b32 s{sT+5}, s{sW}, 1')
        a(f's_lshl_b32 s{sT+5}, s{sT+5}, 15')
        a(f's_add_u32 s{sT+5}, s{sT+5}, {self.WO_L}')
        self.w128_raddr(vRA, False, f's{sT+5}')
        a(f's_lshl_b32 s78, s76, 15')
        a(f's_lshr_b32 s{sT+5}, s{sW}, 1')
        a(f's_lshl_b32 s{sT+5}, s{sT+5}, 14')
        a(f's_add_u32 s78, s78, s{sT+5}')
        if O_OFF:
            a(f's_add_u32 s78, s78, {O_OFF}')
        self.wait_flags(1, sRB)
        self.stamp()
        for n in range(16):
            a(f'buffer_load_dwordx4 {R(XA+4*n,4,"a")}, v{vL16}, s[{SWS}:{SWS+3}], s78 offen offset:{(n&3)*1024} sc1')
            if n & 3 == 3 and n < 15:
                a(f's_add_u32 s78, s78, 4096')
        def wf(t, ct):
            d = WB + ((t % 4) * 2 + ct) * 4
            return d, [f'ds_read_b64_tr_b16 v[{d}:{d+1}], v{vRA+ct} offset:{t*2048}',
                       f'ds_read_b64_tr_b16 v[{d+2}:{d+3}], v{vRA+ct} offset:{t*2048+512}']
        for t in range(3):
            for ct in range(2):
                for s in wf(t, ct)[1]: a(s)
        for j in range(8):
            a(f'v_accvgpr_read_b32 v{96+j}, a{240+j}')
        for b in (96, 100):
            a(f'v_permlane32_swap_b32 v{b}, v{b+2}')
            a(f'v_permlane32_swap_b32 v{b+1}, v{b+3}')
        for t in range(16):
            for ct in range(2):
                acc = (A0, A1)[ct]
                a(f'v_mfma_f32_32x32x16_bf16 {R(acc,16)}, {R(wf(t,ct)[0])}, {R(XA+4*t,4,"a")}, {"0" if t == 0 else R(acc,16)}')
                if t + 3 < 16:
                    for s in wf(t + 3, ct)[1]: a(s)
        self.pair_reduce(A0, A1, WB, 0)
        for j in range(8):
            a(f'v_lshlrev_b32 v{A1+2*j}, 16, v{96+j}')
            a(f'v_and_b32 v{A1+2*j+1}, 0xffff0000, v{96+j}')
        for j in range(0, 16, 2):
            a(f'v_pk_add_f32 v[{A0+j}:{A0+j+1}], v[{A0+j}:{A0+j+1}], v[{A1+j}:{A1+j+1}]')
        for j in range(8):
            a(f'v_cvt_pk_bf16_f32 v{96+j}, v{A0+2*j}, v{A0+2*j+1}')
        a(f's_lshl_b32 s{sT+2}, s76, 15')
        a(f's_lshl_b32 s{sT+3}, s77, 11')
        a(f's_add_u32 s{sT+2}, s{sT+2}, s{sT+3}')
        a(f's_add_u32 s{sT+2}, s{sT+2}, {H_OFF}')
        a(f'buffer_store_dwordx4 {R(96)}, v{vL16}, s[{SWS}:{SWS+3}], s{sT+2} offen sc1')
        a(f'buffer_store_dwordx4 {R(100)}, v{vL16}, s[{SWS}:{SWS+3}], s{sT+2} offen offset:1024 sc1')
        a('v_mov_b32 v104, 0')
        a('v_mov_b32 v105, 0')
        for j in range(8):
            a(f'v_dot2c_f32_bf16 v104, v{96+j}, v109')
            a(f'v_dot2c_f32_bf16 v105, v{96+j}, v{96+j}')
        a('v_permlane32_swap_b32 v104, v105')
        a('v_add_f32 v104, v104, v105')
        a(f's_lshl_b32 s{sT+2}, s76, 12')
        a(f's_lshl_b32 s{sT+3}, s77, 8')
        a(f's_add_u32 s{sT+2}, s{sT+2}, s{sT+3}')
        a(f's_add_u32 s{sT+2}, s{sT+2}, {ST_OFF}')
        a('v_lshlrev_b32 v110, 2, v0')
        a(f'buffer_store_dword v104, v110, s[{SWS}:{SWS+3}], s{sT+2} offen sc1')
        for j in range(8):
            a(f'v_accvgpr_write_b32 a{240+j}, v{96+j}')
        self.publish(2, sRB, sM)
        self.stamp()

    def p3(self):
        a = self.a
        ACC, WB = 128, 16
        vL16, vD, vRA = 1, 2, 8
        CS = 96
        SL = 6208
        Lskip = a.newlabel('P3SKIP')
        a(f's_cmp_eq_u32 s{sM}, 15')
        a(f's_cbranch_scc1 {Lskip}')
        sn0 = a.snapshot()
        for e in range(3):
            a(f'v_add_u32 v110, {64*e}, v0')
            a(f'v_mul_u32_u24 v111, 43691, v110')
            a(f'v_lshrrev_b32 v111, 19, v111')
            a(f'v_mul_u32_u24 v112, 12, v111')
            a(f'v_sub_u32 v112, v110, v112')
            a(f'v_mul_u32_u24 v111, 2752, v111')
            a(f'v_lshl_add_u32 v{vD+e}, v112, 4, v111')
        a(f's_add_u32 s{sT}, s{sRB}, s{sM}')
        for gl in range(8):
            a(f's_add_u32 s{80+gl}, s{sT}, {gl}')
            a(f's_and_b32 s{80+gl}, s{80+gl}, 7')
        a(f's_mul_i32 s78, s{sM}, 192')
        a(f's_mul_i32 s{sT+1}, s{sW}, {16*2752}')
        a(f's_add_u32 s78, s78, s{sT+1}')
        a(f's_mul_i32 s79, s{sW}, {SL}')

        def wdma(gl):
            a(f's_mul_i32 s{sT+5}, s{80+gl}, {64*2752}')
            a(f's_add_u32 s{sT+5}, s{sT+5}, s78')
            for m in range(2):
                for e in range(3):
                    a(f's_add_u32 s{sT+6}, s79, {(gl % 6)*4*SL + m*3104 + e*1024}')
                    dma(a, vD + e, (SWG, SWU)[m], f's{sT+5}', f's{sT+6}', f'g{gl}')
        for gl in range(6):
            wdma(gl)
        a(f'v_bfe_u32 v110, v0, 4, 1')
        a(f'v_mul_u32_u24 v110, 3104, v110')
        a(f'v_lshrrev_b32 v111, 5, v0')
        a(f'v_bfe_u32 v112, v0, 2, 2')
        a(f'v_lshl_add_u32 v111, v111, 2, v112')
        a(f'v_mul_u32_u24 v111, 192, v111')
        a(f'v_add_u32 v110, v110, v111')
        a(f'v_and_b32 v111, 3, v0')
        a(f'v_lshl_add_u32 v110, v111, 3, v110')
        a(f's_lshl_b32 s{sT+2}, s{sRB}, 2')
        a(f's_add_u32 s{sT+2}, s{sT+2}, s{sW}')
        a(f's_lshl_b32 s{sT+3}, s{sT+2}, 15')
        a(f's_add_u32 s{sT+3}, s{sT+3}, {H_OFF}')
        for i in range(4):
            a(f's_add_u32 s{sT+5}, s{sW}, {i}')
            a(f's_and_b32 s{sT+5}, s{sT+5}, 3')
            a(f's_mul_i32 s{sT+6}, s{sT+5}, {SL}')
            a(f'v_add_u32 v{vRA+i}, s{sT+6}, v110')
            a(f's_lshl_b32 s{sT+5}, s{sT+5}, 10')
            a(f's_add_u32 s{88+i}, s{sT+3}, s{sT+5}')
        a(f's_lshl_b32 s73, s{sT+2}, 12')
        a(f's_add_u32 s73, s73, {ST_OFF}')
        a(f's_mul_i32 s74, s{sT+2}, 86')
        a(f's_mul_i32 s{sT+5}, s{sM}, 6')
        a(f's_add_u32 s74, s74, s{sT+5}')
        a(f's_lshl_b32 s74, s74, 10')
        a(f's_add_u32 s74, s74, {HH_OFF}')
        for u in range(6):
            a(f'v_mov_b32 v{CS+u}, 0')
        a('v_lshlrev_b32 v5, 2, v0')
        self.wait_flags(2, sRB)
        self.stamp()
        for tl in range(32):
            if tl & 3 == 0:
                a(f's_lshl_b32 s{sT+5}, s{80+(tl>>2)}, 12')
            a(f's_add_u32 s{sT+6}, s{sT+5}, s{88+(tl&3)}')
            a(f'buffer_load_dwordx4 {R(4*tl,4,"a")}, v{vL16}, s[{SWS}:{SWS+3}], s{sT+6} offen sc1')
        for c in range(16):
            a(f'buffer_load_dword v{64+c}, v5, s[{SWS}:{SWS+3}], s73 offen offset:{c*256} sc1')

        def wf(tl, u):
            d = WB + ((tl & 1) * 6 + u) * 4
            off = ((tl >> 2) & 1) * 4 * SL + u * 32
            return d, [f'ds_read_b64_tr_b16 v[{d}:{d+1}], v{vRA+(tl&3)} offset:{off}',
                       f'ds_read_b64_tr_b16 v[{d+2}:{d+3}], v{vRA+(tl&3)} offset:{off+1536}']
        for ch in range(4):
            a.wait_vm([f'g{2*ch}', f'g{2*ch+1}'])
            a.barrier()
            if ch == 1:
                wdma(6); wdma(7)
            if ch > 0:
                d = 8 * SL if ch < 3 else -16 * SL
                for i in range(4):
                    a(f'v_add_u32 v{vRA+i}, {d}, v{vRA+i}')
            t0 = ch * 8
            for u in range(6):
                for s in wf(t0, u)[1]: a(s)
            for tl in range(t0, t0 + 8):
                for u in range(6):
                    acc = ACC + 16 * u
                    a(f'v_mfma_f32_32x32x16_bf16 {R(acc,16)}, {R(wf(tl,u)[0])}, {R(4*tl,4,"a")}, {"0" if tl == 0 else R(acc,16)}')
                    if tl + 1 < t0 + 8:
                        for s in wf(tl + 1, u)[1]: a(s)
                    if tl & 3 == 0:
                        for j in range(4): a(f'v_dot2c_f32_bf16 v{CS+u}, v{wf(tl,u)[0]+j}, v109')
            a.wait_lg()
        self.stamp()
        SC = 24 * SL
        for p in range(3):
            a(f'v_permlane32_swap_b32 v{CS+2*p}, v{CS+2*p+1}')
            a(f'v_add_f32 v{CS+2*p}, v{CS+2*p}, v{CS+2*p+1}')
        a(f's_mul_i32 s{sT}, s{sW}, 256')
        a(f's_add_u32 s{sT}, s{sT}, {SC}')
        a(f'v_lshl_add_u32 v110, v0, 2, s{sT}')
        for p in range(3):
            a(f'ds_write_b32 v110, v{CS+2*p} offset:{p*1024}')
        for c in range(0, 16, 4):
            a(f'v_pk_add_f32 v[{64+c}:{65+c}], v[{64+c}:{65+c}], v[{66+c}:{67+c}]')
        a('v_pk_add_f32 v[64:65], v[64:65], v[68:69]')
        a('v_pk_add_f32 v[72:73], v[72:73], v[76:77]')
        a('v_pk_add_f32 v[64:65], v[64:65], v[72:73]')
        a('v_add_f32 v104, v64, v65')
        a('v_mov_b32 v105, v104')
        a('v_permlane32_swap_b32 v104, v105')
        a.wait_lg()
        a.barrier()
        a(f'v_and_b32 v111, 31, v0')
        a(f'v_lshlrev_b32 v111, 2, v111')
        for p in range(3):
            a(f'v_add_u32 v110, {SC + p*1024}, v111')
            for w in range(4):
                a(f'ds_read2_b32 v[{WB+8*p+2*w}:{WB+8*p+2*w+1}], v110 offset0:{w*64} offset1:{w*64+32}')
        self.ln_stats(104, 105, 112, 116, 118)
        a('v_mul_f32 v116, v116, v116')
        a('v_mov_b32 v117, v116')
        for p in range(3):
            b = WB + 8 * p
            a(f'v_pk_add_f32 v[{b}:{b+1}], v[{b}:{b+1}], v[{b+2}:{b+3}]')
            a(f'v_pk_add_f32 v[{b+4}:{b+5}], v[{b+4}:{b+5}], v[{b+6}:{b+7}]')
            a(f'v_pk_add_f32 v[{b}:{b+1}], v[{b}:{b+1}], v[{b+4}:{b+5}]')
        for u in range(6):
            self.cs_frag(WB + 8 * (u >> 1) + (u & 1), 64 + 4 * u, 118)
            acc = ACC + 16 * u
            a(f'v_mfma_f32_32x32x16_bf16 {R(acc,16)}, {R(64+4*u)}, {R(112)}, {R(acc,16)}')
        Lst = a.newlabel('P3ST')
        for u in range(6):
            acc = ACC + 16 * u
            if u == 2:
                a(f's_cmp_eq_u32 s{sM}, 14')
                a(f's_cbranch_scc1 {Lst}')
            if u == 4:
                a('s_add_u32 s74, s74, 4096')
            for j in range(0, 8, 2):
                a(f'v_pk_mul_f32 v[{acc+j}:{acc+j+1}], v[{acc+j}:{acc+j+1}], v[116:117]')
            for j in range(0, 8, 2):
                a(f'v_pk_mul_f32 v[{acc+j}:{acc+j+1}], v[{acc+j}:{acc+j+1}], v[{acc+8+j}:{acc+9+j}]')
            for j in range(4):
                a(f'v_cvt_pk_bf16_f32 v{acc+8+j}, v{acc+2*j}, v{acc+2*j+1}')
            a(f'buffer_store_dwordx4 {R(acc+8)}, v{vL16}, s[{SWS}:{SWS+3}], s74 offen offset:{(u&3)*1024} sc1')
        a.label(Lst)
        a.nop(12)
        self.publish(3, sRB, sM)
        a.label(Lskip)
        a.force_wait('vmcnt(0) lgkmcnt(0)')
        self.stamp()

    def p4(self):
        a = self.a
        A0, A1, WB = 16, 32, 64
        vL16, vD, vRA = 1, 3, 4
        HALF = 80 * 1024
        self.w128_voff(vD, 110)
        a(f's_and_b32 s{sT}, s{sM}, 7')
        a(f's_lshl_b32 s{sT}, s{sT}, 7')
        a(f's_lshr_b32 s{sT+1}, s{sW}, 1')
        a(f's_and_b32 s{sT+2}, s{sW}, 1')
        a(f's_mul_i32 s78, s{sT+1}, {86*8192}')
        a(f's_add_u32 s78, s78, s{sT}')
        a(f's_lshl_b32 s{sT+3}, s{sT+2}, 13')
        a(f's_add_u32 s78, s78, s{sT+3}')
        a(f's_mul_i32 s80, s{sT+1}, {HALF}')
        a(f's_lshl_b32 s{sT+3}, s{sT+2}, 10')
        a(f's_add_u32 s79, s80, s{sT+3}')

        def wdma(t):
            a(f's_add_u32 s{sT+5}, s78, {t*16384}')
            a(f's_add_u32 s{sT+6}, s79, {(t % 40)*2048}')
            dma(a, vD, SWD, f's{sT+5}', f's{sT+6}', f'd{t//8}')
        for t in range(40):
            wdma(t)
        self.w128_raddr(vRA, True, 's80')
        a(f'v_add_u32 v{vRA+2}, {20*2048}, v{vRA}')
        a(f'v_add_u32 v{vRA+3}, {20*2048}, v{vRA+1}')
        a(f's_mul_i32 s81, s76, 86')
        a(f's_mul_i32 s{sT+3}, s{sT+1}, 43')
        a(f's_add_u32 s81, s81, s{sT+3}')
        a(f's_lshl_b32 s81, s81, 10')
        a(f's_add_u32 s81, s81, {HH_OFF}')
        self.wait_flags(3, sRB, 15)
        self.stamp()
        for n in range(43):
            a(f'buffer_load_dwordx4 {R(4*n,4,"a")}, v{vL16}, s[{SWS}:{SWS+3}], s81 offen offset:{(n&3)*1024} sc1')
            if n & 3 == 3:
                a(f's_add_u32 s81, s81, 4096')
        def wf(t, ct):
            d = WB + ((t % 4) * 2 + ct) * 4
            sl = t % 40
            base = vRA + ct + (2 if sl >= 20 else 0)
            off = (sl % 20) * 2048
            return d, [f'ds_read_b64_tr_b16 v[{d}:{d+1}], v{base} offset:{off}',
                       f'ds_read_b64_tr_b16 v[{d+2}:{d+3}], v{base} offset:{off+1024}']
        chunks = [(0, 8), (8, 40), (40, 43)]
        for ci, (t0, t1) in enumerate(chunks):
            a.wait_vm([f'd{x}' for x in range(t0 // 8, (t1 + 7) // 8)])
            a.barrier()
            if ci == 1:
                for t in range(40, 43): wdma(t)
            for t in range(t0, min(t0 + 3, t1)):
                for ct in range(2):
                    for s in wf(t, ct)[1]: a(s)
            for t in range(t0, t1):
                for ct in range(2):
                    acc = (A0, A1)[ct]
                    a(f'v_mfma_f32_32x32x16_bf16 {R(acc,16)}, {R(wf(t,ct)[0])}, {R(4*t,4,"a")}, {"0" if t == 0 else R(acc,16)}')
                    if t + 3 < t1:
                        for s in wf(t + 3, ct)[1]: a(s)
            a.wait_lg()
        self.stamp()
        self.pair_reduce(A0, A1, WB, 32768)
        for j in range(8):
            a(f'v_accvgpr_read_b32 v{96+j}, a{240+j}')
        for j in range(8):
            a(f'v_lshlrev_b32 v{A1+2*j}, 16, v{96+j}')
            a(f'v_and_b32 v{A1+2*j+1}, 0xffff0000, v{96+j}')
        for j in range(0, 16, 2):
            a(f'v_pk_add_f32 v[{A0+j}:{A0+j+1}], v[{A0+j}:{A0+j+1}], v[{A1+j}:{A1+j+1}]')
        for j in range(8):
            a(f'v_cvt_pk_bf16_f32 v{96+j}, v{A0+2*j}, v{A0+2*j+1}')
        self.tile_off()
        for b in (96, 100):
            a(f'v_permlane32_swap_b32 v{b}, v{b+2}')
            a(f'v_permlane32_swap_b32 v{b+1}, v{b+3}')
        a(f'buffer_store_dwordx4 {R(96)}, v110, s[{SOUT}:{SOUT+3}], s{sT+3} offen')
        a(f'buffer_store_dwordx4 {R(100)}, v110, s[{SOUT}:{SOUT+3}], s{sT+3} offen offset:32')
        self.stamp()

    def build(self):
        a = self.a
        hdr = open('sequential_preLN__linear_kernel_hedgehog__glu_gated_bilinear__prompt.s.ref').read().split('\n')
        for l in hdr:
            if l.startswith('; @launch'):
                a.raw('; @launch grid=(256,1,1) block=(256,1,1) lds=163840')
                break
            a.raw(l)
        a.raw('.amdgcn_target "amdgcn-amd-amdhsa--gfx950"')
        a.raw('.text')
        a.raw(f'.globl {NAME}')
        a.raw('.p2align 8')
        a.raw(f'.type {NAME},@function')
        a.raw(f'{NAME}:')
        self.prologue()
        self.stamp()
        self.p1()
        if self.stop >= 2: self.p2()
        if self.stop >= 3: self.p3()
        if self.stop >= 4: self.p4()
        a.label('L_end')
        a.raw('s_endpgm')
        a.raw('.section .rodata,"a"')
        a.raw('.p2align 6')
        a.raw(f'.amdhsa_kernel {NAME}')
        a.raw('  .amdhsa_next_free_vgpr 512')
        a.raw('  .amdhsa_next_free_sgpr 102')
        a.raw('  .amdhsa_accum_offset 256')
        a.raw('  .amdhsa_group_segment_fixed_size 0')
        a.raw('  .amdhsa_kernarg_size 88')
        a.raw('  .amdhsa_user_sgpr_count 2')
        a.raw('  .amdhsa_user_sgpr_kernarg_segment_ptr 1')
        a.raw('  .amdhsa_system_sgpr_workgroup_id_x 1')
        a.raw('.end_amdhsa_kernel')
        return a.text()


if __name__ == '__main__':
    out = sys.argv[1]
    ts = 'ts' in sys.argv[2:]
    k = K(ts=ts)
    t = k.build()
    open(out, 'w').write(t)
    print(len(t), 'bytes', k.a.stats, 'nops', k.a.nops)
```

```python
import sys
sys.path.insert(0, 'gen')
from prog import *

NAME = 'sequential_preLN__linear_kernel_hedgehog__glu_gated_bilinear__prompt_kernel'
O_OFF = 0
H_OFF = 2 << 20
HH_OFF = 4 << 20
KV_OFF = 10 << 20
ST_OFF = 12 << 20
FL_OFF = 13 << 20
TS_OFF = 14 << 20
SX, SWQKV, SPHI, SWO, SWG, SWU, SWD, SOUT, SDBG, SWS = 28, 32, 36, 40, 44, 48, 52, 56, 60, 64
sW, sRB, sM, sG1, sRB1 = 68, 69, 70, 71, 72
sT = 92
LOG2E = 1.4426950408889634


def R(b, n=4, f='v'):
    return f'{f}[{b}:{b+n-1}]' if n > 1 else f'{f}{b}'


def srd(a, d, base, nbytes):
    a(f's_mov_b32 s{d}, s{base}')
    a(f's_and_b32 s{d+1}, s{base+1}, 0xffff')
    a(f's_mov_b32 s{d+2}, {nbytes}')
    a(f's_mov_b32 s{d+3}, 0x00020000')


def dma(a, voff, srd_, soff, lds, tag, flags=''):
    a(f's_mov_b32 m0, {lds}')
    a(f'buffer_load_dwordx4 v{voff}, s[{srd_}:{srd_+3}], {soff} offen {flags} lds', tag=tag)


class K:
    def __init__(self, ts=False, stop=99):
        self.a = Prog()
        self.ts = ts
        self.nts = 0
        self.stop = stop

    def stamp(self):
        if not self.ts:
            return
        a = self.a
        L = a.newlabel('TS')
        a('s_memrealtime s[100:101]')
        a(f's_cmp_lg_u32 s{sW}, 0')
        a(f's_cbranch_scc1 {L}')
        sn = a.snapshot()
        a('v_mov_b32 v126, s100')
        if self.ts == 'dbg':
            a(f's_cmp_lg_u32 s2, {self.tswg}')
            a(f's_cbranch_scc1 {L}')
            a('v_mov_b32 v127, 0')
            a(f'buffer_store_dword v126, v127, s[{SDBG}:{SDBG+3}], 0 offen offset:{8+4*self.nts}')
        else:
            a(f's_lshl_b32 s101, s2, 8')
            a(f's_add_u32 s101, s101, {TS_OFF + 4*self.nts}')
            a('v_mov_b32 v127, 0')
            a(f'buffer_store_dword v126, v127, s[{SWS}:{SWS+3}], s101 offen')
        a.label(L)
        a.restore(sn)
        a.force_wait('lgkmcnt(0)')
        self.extra_vm()
        self.nts += 1

    def extra_vm(self):
        a = self.a
        pass

    def prologue(self):
        a = self.a
        a('s_cmp_ge_u32 s2, 256')
        a('s_cbranch_scc1 L_end')
        a('s_load_dwordx16 s[4:19], s[0:1], 0')
        a('s_load_dwordx4 s[20:23], s[0:1], 64')
        a('s_load_dwordx2 s[24:25], s[0:1], 80')
        a('v_lshrrev_b32 v1, 6, v0')
        a('v_and_b32 v0, 63, v0')
        a(f'v_readfirstlane_b32 s{sW}, v1')
        a(f's_and_b32 s{sT}, s2, 7')
        a(f's_lshr_b32 s{sT+1}, s2, 3')
        a(f's_and_b32 s{sRB}, s{sT+1}, 1')
        a(f's_lshl_b32 s{sT+2}, s{sT}, 1')
        a(f's_add_u32 s{sRB}, s{sRB}, s{sT+2}')
        a(f's_lshr_b32 s{sM}, s2, 4')
        a(f's_mov_b32 s{sRB1}, s{sRB}')
        a(f's_mov_b32 s{sG1}, s{sM}')
        srd(a, SX, 4, 2048 * 512 * 2)
        srd(a, SWQKV, 6, 512 * 1536 * 2)
        srd(a, SPHI, 8, 32 * 16 * 16 * 2)
        srd(a, SWO, 10, 512 * 512 * 2)
        srd(a, SWG, 14, 512 * 1376 * 2)
        srd(a, SWU, 16, 512 * 1376 * 2)
        srd(a, SWD, 18, 1376 * 512 * 2)
        srd(a, SOUT, 20, 2048 * 512 * 2)
        srd(a, SDBG, 22, 256)
        srd(a, SWS, 24, 268435456)
        L = a.newlabel('NON')
        a(f's_or_b32 s{sT}, s2, s{sW}')
        a(f's_cmp_lg_u32 s{sT}, 0')
        a(f's_cbranch_scc1 {L}')
        sn = a.snapshot()
        a('s_memrealtime s[74:75]')
        a('v_mov_b32 v1, 0')
        a('s_or_b32 s75, s75, 0x80000000')
        a('v_mov_b32 v2, s74')
        a('v_mov_b32 v3, s75')
        a('s_mov_b64 exec, 1')
        a(f'buffer_store_dwordx2 v[2:3], v1, s[{SDBG}:{SDBG+3}], 0 offen sc1')
        a('s_mov_b64 exec, -1')
        a.nop(2)
        a.label(L)
        a.restore(sn)

    def get_nonce(self):
        a = self.a
        L, P = a.newlabel('GN'), a.newlabel('GP')
        a(f's_cmp_lg_u32 s{sW}, 0')
        a(f's_cbranch_scc1 {L}')
        sn = a.snapshot()
        a(f's_mov_b32 s{sT}, 0')
        a('v_mov_b32 v123, 0')
        a.label(P)
        a(f'buffer_load_dwordx2 v[124:125], v123, s[{SDBG}:{SDBG+3}], 0 offen sc1')
        a.force_wait('vmcnt(0)')
        a('v_cmp_eq_u32 vcc, 0, v125')
        a(f's_add_u32 s{sT}, s{sT}, 1')
        a(f's_cmp_gt_u32 s{sT}, 400000')
        a(f's_cbranch_scc1 {L}')
        a(f's_cbranch_vccnz {P}')
        a.label(L)
        a.restore(sn)

    def publish(self, kind, sgroup, smember):
        a = self.a
        a.force_wait('vmcnt(0)')
        a.barrier()
        L = a.newlabel('PB')
        a(f's_cmp_lg_u32 s{sW}, 0')
        a(f's_cbranch_scc1 {L}')
        sn = a.snapshot()
        a(f's_lshl_b32 s{sT}, s{sgroup}, 7')
        a(f's_lshl_b32 s{sT+1}, s{smember}, 3')
        a(f's_add_u32 s{sT}, s{sT}, s{sT+1}')
        a(f's_add_u32 s{sT}, s{sT}, {FL_OFF + kind*2048}')
        a('v_mov_b32 v123, 0')
        a('s_mov_b64 exec, 1')
        a(f'buffer_store_dwordx2 v[124:125], v123, s[{SWS}:{SWS+3}], s{sT} offen sc1')
        a('s_mov_b64 exec, -1')
        a.label(L)
        a.restore(sn)

    def wait_flags(self, kind, sgroup, n=16):
        a = self.a
        L, P = a.newlabel('WF'), a.newlabel('WP')
        a(f's_cmp_lg_u32 s{sW}, 0')
        a(f's_cbranch_scc1 {L}')
        sn = a.snapshot()
        a(f's_lshl_b32 s{sT}, s{sgroup}, 7')
        a(f's_add_u32 s{sT}, s{sT}, {FL_OFF + kind*2048}')
        a('v_and_b32 v123, 15, v0')
        a(f'v_min_u32 v123, {n-1}, v123')
        a('v_lshlrev_b32 v123, 3, v123')
        a(f's_mov_b32 s{sT+1}, 0')
        a.label(P)
        a(f'buffer_load_dwordx2 v[120:121], v123, s[{SWS}:{SWS+3}], s{sT} offen sc1')
        a.force_wait('vmcnt(0)')
        a('v_cmp_ne_u64 vcc, v[120:121], v[124:125]')
        a(f's_add_u32 s{sT+1}, s{sT+1}, 1')
        a(f's_cmp_gt_u32 s{sT+1}, 400000')
        a(f's_cbranch_scc1 {L}')
        a(f's_cbranch_vccnz {P}')
        a.label(L)
        a.restore(sn)
        a.barrier()

    def ln_stats(self, vsum, vsq, vnegm, vrstd, t):
        a = self.a
        a(f'v_mul_f32 v{vsum}, {1.0/512}, v{vsum}')
        a(f'v_mul_f32 v{vsq}, {1.0/512}, v{vsq}')
        a(f'v_fma_f32 v{vsq}, -v{vsum}, v{vsum}, v{vsq}')
        a(f'v_max_f32 v{vsq}, 0, v{vsq}')
        a(f'v_cvt_pk_bf16_f32 v{vnegm}, v{vsum}, v{vsum}')
        a(f'v_cvt_pk_bf16_f32 v{vsq}, v{vsq}, v{vsq}')
        a(f'v_xor_b32 v{vnegm}, 0x80008000, v{vnegm}')
        a(f'v_and_b32 v{vsq}, 0xffff0000, v{vsq}')
        a(f'v_cmp_gt_u32 vcc, 32, v0')
        a(f'v_add_f32 v{vsq}, 0x3727c5ac, v{vsq}')
        a(f'v_cvt_pk_bf16_f32 v{vsq}, v{vsq}, v{vsq}')
        a(f'v_cndmask_b32 v{vnegm}, 0, v{vnegm}, vcc')
        a(f'v_and_b32 v{vsq}, 0xffff0000, v{vsq}')
        a(f'v_sqrt_f32 v{vsq}, v{vsq}')
        a(f'v_and_b32 v{vnegm+1}, 0xffff, v{vnegm}')
        a(f'v_cvt_pk_bf16_f32 v{vsq}, v{vsq}, v{vsq}')
        a(f'v_mov_b32 v{vnegm+2}, 0')
        a(f'v_and_b32 v{vsq}, 0xffff0000, v{vsq}')
        a(f'v_mov_b32 v{vnegm+3}, 0')
        a(f'v_rcp_f32 v{vrstd}, v{vsq}')

    def cs_frag(self, vcs, dst, t):
        a = self.a
        a(f'v_and_b32 v{t}, 0xffff0000, v{vcs}')
        a(f'v_sub_f32 v{t+1}, v{vcs}, v{t}')
        a(f'v_and_b32 v{dst}, 0xffff0000, v{t+1}')
        a(f'v_sub_f32 v{dst+1}, v{t+1}, v{dst}')
        a(f'v_lshrrev_b32 v{t}, 16, v{t}')
        a(f'v_or_b32 v{dst}, v{dst}, v{t}')
        a(f'v_lshrrev_b32 v{dst+1}, 16, v{dst+1}')
        a(f'v_mov_b32 v{dst+2}, 0')
        a(f'v_mov_b32 v{dst+3}, 0')

    def softmax(self, d, vc, out, t):
        a = self.a
        a(f'v_max3_f32 v{t}, v{d}, v{d+1}, v{d+2}')
        a(f'v_max3_f32 v{t+1}, v{d+3}, v{d+4}, v{d+5}')
        for i in (6, 10):
            a(f'v_max3_f32 v{t}, v{t}, v{d+i}, v{d+i+1}')
            a(f'v_max3_f32 v{t+1}, v{t+1}, v{d+i+2}, v{d+i+3}')
        a(f'v_max3_f32 v{t}, v{t}, v{d+14}, v{d+15}')
        a(f'v_max_f32 v{t}, v{t}, v{t+1}')
        a(f'v_mul_f32 v{t}, v{t}, v{vc}')
        for i in range(16):
            a(f'v_fma_f32 v{d+i}, v{d+i}, v{vc}, -v{t}')
        for i in range(16):
            a(f'v_exp_f32 v{d+i}, v{d+i}')
        a(f'v_pk_add_f32 v[{t}:{t+1}], v[{d}:{d+1}], v[{d+2}:{d+3}]')
        for i in range(4, 16, 2):
            a(f'v_pk_add_f32 v[{t}:{t+1}], v[{t}:{t+1}], v[{d+i}:{d+i+1}]')
        a(f'v_add_f32 v{t}, v{t}, v{t+1}')
        a(f'v_rcp_f32 v{t}, v{t}')
        a(f'v_mov_b32 v{t+1}, v{t}')
        for i in range(0, 16, 2):
            a(f'v_pk_mul_f32 v[{d+i}:{d+i+1}], v[{d+i}:{d+i+1}], v[{t}:{t+1}]')
        for i in range(8):
            a(f'v_cvt_pk_bf16_f32 v{out+i}, v{d+2*i}, v{d+2*i+1}')

    def p1(self):
        a = self.a
        X0, AK, AV, AQ, WB, PH = 128, 16, 32, 48, 64, 96
        vSUM, vSQ, vCK, vCV, vCQ, vONE = 104, 105, 106, 107, 108, 109
        vXE, vXO, vWD = 1, 2, 3
        vXR = 4
        vWR = 8
        WL = 65536
        a(f'v_lshrrev_b32 v110, 4, v0')
        a(f'v_and_b32 v111, 7, v0')
        a(f'v_xor_b32 v110, v110, v111')
        a(f'v_lshlrev_b32 v110, 4, v110')
        a(f'v_lshrrev_b32 v111, 3, v0')
        a(f'v_lshl_add_u32 v{vXE}, v111, 10, v110')
        a(f'v_xor_b32 v{vXO}, 64, v{vXE}')
        a(f'v_lshrrev_b32 v110, 2, v0')
        a(f'v_mul_u32_u24 v110, 3072, v110')
        a(f'v_and_b32 v111, 3, v0')
        a(f'v_lshl_add_u32 v{vWD}, v111, 4, v110')
        a(f's_lshl_b32 s{sT}, s{sRB1}, 17')
        a(f's_lshl_b32 s{sT+1}, s{sW}, 15')
        a(f's_add_u32 s{sT}, s{sT}, s{sT+1}')
        a(f's_lshl_b32 s{sT+1}, s{sG1}, 6')
        a(f's_add_u32 s{sT+2}, s{sRB1}, s{sG1}')
        for sl in range(8):
            a(f's_add_u32 s{sT+3}, s{sT+2}, {sl}')
            a(f's_and_b32 s{sT+3}, s{sT+3}, 7')
            a(f's_lshl_b32 s{76+sl}, s{sT+3}, 7')
            a(f's_add_u32 s{76+sl}, s{76+sl}, s{sT}')
            a(f's_mul_i32 s{84+sl}, s{sT+3}, {64*3072}')
            a(f's_add_u32 s{84+sl}, s{84+sl}, s{sT+1}')
        a(f's_lshl_b32 s{sT+4}, s{sW}, 14')

        def xdma(half):
            for sl in range(4):
                for q in range(4):
                    a(f's_add_u32 s{sT+5}, s{76+4*half+sl}, {q*8192}')
                    a(f's_add_u32 s{sT+6}, s{sT+4}, {(sl*4+q)*1024}')
                    dma(a, vXO if q & 1 else vXE, SX, f's{sT+5}', f's{sT+6}', f'x{half}_{sl}')
        a(f's_mul_i32 s{sT+7}, s{sW}, {16*3072}')
        a(f's_mul_i32 s73, s{sW}, 3072')
        a(f's_add_u32 s73, s73, {WL}')

        def wdma(sl, m, tag):
            moff = (1024, 2048, 0)[m]
            a(f's_add_u32 s{sT+5}, s{84+sl}, s{sT+7}')
            if moff:
                a(f's_add_u32 s{sT+5}, s{sT+5}, {moff}')
            a(f's_add_u32 s{sT+6}, s73, {sl*4*3072 + m*1024}')
            dma(a, vWD, SWQKV, f's{sT+5}', f's{sT+6}', tag)
        xdma(0)
        for sl in range(8):
            wdma(sl, 0, f'w{sl}')
            wdma(sl, 1, f'w{sl}')
        a(f'v_and_b32 v110, 31, v0')
        a(f'v_lshrrev_b32 v111, 1, v110')
        a(f'v_and_b32 v111, 7, v111')
        a(f'v_lshrrev_b32 v112, 5, v0')
        a(f'v_xor_b32 v111, v111, v112')
        a(f'v_lshlrev_b32 v111, 4, v111')
        a(f'v_lshl_add_u32 v111, v110, 7, v111')
        a(f'v_add_u32 v111, s{sT+4}, v111')
        a(f'v_lshrrev_b32 v113, 5, v0')
        a(f'v_lshlrev_b32 v113, 9, v113')
        a(f'v_bfe_u32 v114, v0, 2, 2')
        a(f'v_lshl_add_u32 v113, v114, 6, v113')
        a(f'v_bfe_u32 v114, v0, 4, 1')
        a(f'v_lshl_add_u32 v113, v114, 5, v113')
        a(f'v_and_b32 v114, 3, v0')
        a(f'v_lshl_add_u32 v113, v114, 3, v113')
        for i in range(4):
            a(f's_add_u32 s{sT+5}, s{sW}, {i}')
            a(f's_and_b32 s{sT+5}, s{sT+5}, 3')
            a(f's_lshl_b32 s{sT+6}, s{sT+5}, 5')
            a(f'v_xor_b32 v{vXR+i}, s{sT+6}, v111')
            a(f's_mul_i32 s{sT+6}, s{sT+5}, 3072')
            a(f's_add_u32 s{sT+6}, s{sT+6}, {WL}')
            a(f'v_add_u32 v{vWR+i}, s{sT+6}, v113')
            a(f'v_add_u32 v{vWR+4+i}, {16*3072}, v{vWR+i}')
        a(f'v_mov_b32 v{vONE}, 0x3f803f80')
        for r in (vSUM, vSQ, vCK, vCV, vCQ):
            a(f'v_mov_b32 v{r}, 0')

        def xread(half):
            for sl in range(4):
                a.wait_vm(f'x{half}_{sl}')
                for i in range(4):
                    a(f'ds_read_b128 {R(X0 + (half*16 + sl*4 + i)*4)}, v{vXR+i} offset:{sl*4096}')

        def wfrag(tl, m, dst):
            base = vWR + (4 if tl >= 16 else 0) + (tl & 3)
            off = ((tl & 15) >> 2) * 4 * 3072 + m * 1024
            return [f'ds_read_b64_tr_b16 v[{dst}:{dst+1}], v{base} offset:{off}',
                    f'ds_read_b64_tr_b16 v[{dst+2}:{dst+3}], v{base} offset:{off+256}']

        def stats(tl):
            o = []
            for j in range(4):
                x = X0 + tl * 4 + j
                o.append(f'v_dot2c_f32_bf16 v{vSUM}, v{x}, v{vONE}')
                o.append(f'v_dot2c_f32_bf16 v{vSQ}, v{x}, v{x}')
            return o
        xread(0)
        a.wait_lg()
        xdma(1)
        for sl in range(8):
            wdma(sl, 2, 'wq')
        a(f'v_and_b32 v110, 3, v0')
        a(f'v_bfe_u32 v111, v0, 3, 2')
        a(f'v_lshl_add_u32 v110, v111, 2, v110')
        a(f'v_lshlrev_b32 v110, 1, v110')
        a(f'v_lshrrev_b32 v111, 5, v0')
        a(f'v_lshl_add_u32 v110, v111, 7, v110')
        a(f's_lshl_b32 s{sT+5}, s{sG1}, 10')
        for t in range(2):
            for j in range(8):
                d = (j & 3) + 8 * (j >> 2)
                a(f'buffer_load_ushort v{AQ + t*8 + j}, v110, s[{SPHI}:{SPHI+3}], s{sT+5} offen offset:{t*512 + d*32}')
        NB = 4
        def buf(tl, m):
            return WB + ((tl % NB) * 2 + m) * 4
        for ch in range(4):
            if ch == 2:
                xread(1)
                a.wait_lg()
            a.wait_vm([f'w{2*ch}', f'w{2*ch+1}'])
            a.barrier()
            t0 = ch * 8
            for tl in range(t0, t0 + 2):
                for m in range(2):
                    for s in wfrag(tl, m, buf(tl, m)): a(s)
            for tl in range(t0, t0 + 8):
                fill = []
                if tl + 2 < t0 + 8:
                    for m in range(2): fill += wfrag(tl + 2, m, buf(tl + 2, m))
                st = stats(tl)
                c0 = '0' if tl == 0 else None
                a(f'v_mfma_f32_32x32x16_bf16 {R(AK,16)}, {R(buf(tl,0))}, {R(X0+tl*4)}, {c0 or R(AK,16)}')
                for s in fill[:2] + st[:4]: a(s)
                if tl & 3 == 0:
                    for j in range(4): a(f'v_dot2c_f32_bf16 v{vCK}, v{buf(tl,0)+j}, v{vONE}')
                a(f'v_mfma_f32_32x32x16_bf16 {R(AV,16)}, {R(buf(tl,1))}, {R(X0+tl*4)}, {c0 or R(AV,16)}')
                for s in fill[2:] + st[4:]: a(s)
                if tl & 3 == 0:
                    for j in range(4): a(f'v_dot2c_f32_bf16 v{vCV}, v{buf(tl,1)+j}, v{vONE}')
        self.stamp()
        vNM, vRS, vC2 = 112, 116, 117
        a(f'v_permlane32_swap_b32 v{vCK}, v{vCV}')
        a(f'v_add_f32 v{vCK}, v{vCK}, v{vCV}')
        a(f's_lshl_b32 s{sT}, s{sW}, 8')
        a(f'v_lshl_add_u32 v110, v0, 2, s{sT}')
        a(f'ds_write_b32 v110, v{vCK}')
        a(f'v_mov_b32 v118, v{vSUM}')
        a(f'v_mov_b32 v119, v{vSQ}')
        a(f'v_permlane32_swap_b32 v{vSUM}, v118')
        a(f'v_permlane32_swap_b32 v{vSQ}, v119')
        a(f'v_add_f32 v{vSUM}, v{vSUM}, v118')
        a(f'v_add_f32 v{vSQ}, v{vSQ}, v119')
        a.wait_lg()
        a.barrier()
        a(f'v_and_b32 v111, 31, v0')
        a(f'v_lshlrev_b32 v111, 2, v111')
        for w in range(4):
            a(f'ds_read2_b32 v[{WB+2*w}:{WB+2*w+1}], v111 offset0:{w*64} offset1:{w*64+32}')
        self.ln_stats(vSUM, vSQ, vNM, vRS, 118)
        a(f'v_mul_f32 v{vC2}, {LOG2E}, v{vRS}')
        a(f'v_pk_add_f32 v[{WB}:{WB+1}], v[{WB}:{WB+1}], v[{WB+2}:{WB+3}]')
        a(f'v_pk_add_f32 v[{WB+4}:{WB+5}], v[{WB+4}:{WB+5}], v[{WB+6}:{WB+7}]')
        a(f'v_pk_add_f32 v[{WB}:{WB+1}], v[{WB}:{WB+1}], v[{WB+4}:{WB+5}]')
        self.cs_frag(WB, WB + 8, 118)
        a(f'v_mfma_f32_32x32x16_bf16 {R(AK,16)}, {R(WB+8)}, {R(vNM)}, {R(AK,16)}')
        self.cs_frag(WB + 1, WB + 12, 118)
        a(f'v_mfma_f32_32x32x16_bf16 {R(AV,16)}, {R(WB+12)}, {R(vNM)}, {R(AV,16)}')
        a(f'v_bfe_u32 v110, v0, 2, 1')
        a(f'v_mul_u32_u24 v110, 0x8000, v110')
        a(f'v_lshl_add_u32 v110, v110, 16, v110')
        for j in range(8):
            a(f'v_lshl_or_b32 v{PH+j}, v{AQ+2*j+1}, 16, v{AQ+2*j}')
            a(f'v_xor_b32 v{PH+j}, v110, v{PH+j}')
        PHL, VVL = 4096, 4096 + 16384
        a(f'v_and_b32 v110, 7, v0')
        a(f'v_lshrrev_b32 v111, 1, v0')
        a(f'v_and_b32 v111, 4, v111')
        a(f'v_xor_b32 v110, v110, v111')
        a(f'v_lshrrev_b32 v111, 5, v0')
        a(f'v_lshlrev_b32 v111, 1, v111')
        a(f'v_xor_b32 v110, v110, v111')
        a(f'v_lshlrev_b32 v110, 4, v110')
        a(f'v_and_b32 v111, 31, v0')
        a(f'v_lshl_add_u32 v110, v111, 7, v110')
        a(f's_lshl_b32 s{sT}, s{sW}, 12')
        a(f's_add_u32 s{sT}, s{sT}, {PHL}')
        a(f'v_add_u32 v{vXE}, s{sT}, v110')
        a(f'v_bfe_u32 v110, v0, 1, 2')
        a(f'v_bfe_u32 v118, v0, 3, 1')
        a(f'v_xor_b32 v110, v110, v118')
        a(f'v_lshrrev_b32 v118, 5, v0')
        a(f'v_lshlrev_b32 v118, 1, v118')
        a(f'v_xor_b32 v110, v110, v118')
        a(f'v_lshlrev_b32 v110, 4, v110')
        a(f'v_lshl_add_u32 v110, v111, 6, v110')
        a(f's_lshl_b32 s{sT}, s{sW}, 11')
        a(f's_add_u32 s{sT}, s{sT}, {VVL}')
        a(f'v_add_u32 v{vXO}, s{sT}, v110')
        for i in range(8):
            a(f'v_cvt_pk_bf16_f32 v{AK+i}, v{AK+2*i}, v{AK+2*i+1}')
        for t in range(2):
            a(f'v_mfma_f32_32x32x16_bf16 {R(WB+16*t,16)}, {R(PH+4*t)}, {R(AK+4*t)}, 0')
        a(f'v_mov_b32 v118, v{vRS}')
        a(f'v_mov_b32 v119, v{vRS}')
        for i in range(8):
            a(f'v_pk_mul_f32 v[{AV+2*i}:{AV+2*i+1}], v[{AV+2*i}:{AV+2*i+1}], v[118:119]')
        for i in range(8):
            a(f'v_cvt_pk_bf16_f32 v{AV+i}, v{AV+2*i}, v{AV+2*i+1}')
        a(f'v_xor_b32 v110, 16, v{vXO}')
        a(f'ds_write_b128 v{vXO}, {R(AV)}')
        a(f'ds_write_b128 v110, {R(AV+4)}')
        for t in range(2):
            self.softmax(WB + 16 * t, vC2, AK + 8 * t, 118)
            a(f'v_xor_b32 v110, {64*t}, v{vXE}')
            a(f'v_xor_b32 v111, {64*t+16}, v{vXE}')
            a(f'ds_write_b128 v110, {R(AK+8*t)}')
            a(f'ds_write_b128 v111, {R(AK+8*t+4)}')
        a(f's_and_b32 s{sT}, s{sW}, 1')
        a(f's_lshr_b32 s{sT+1}, s{sW}, 1')
        a(f's_lshl_b32 s{sT+2}, s{sT}, 2')
        a(f's_lshl_b32 s{sT+3}, s{sT+1}, 1')
        a(f's_add_u32 s{sT+2}, s{sT+2}, s{sT+3}')
        a(f'v_bfe_u32 v110, v0, 1, 1')
        a(f'v_bfe_u32 v111, v0, 2, 2')
        a(f'v_xor_b32 v110, v110, v111')
        a(f'v_bfe_u32 v118, v0, 4, 1')
        a(f'v_lshlrev_b32 v118, 2, v118')
        a(f'v_xor_b32 v110, v110, v118')
        a(f'v_xor_b32 v110, s{sT+2}, v110')
        a(f'v_lshlrev_b32 v110, 4, v110')
        a(f'v_and_b32 v118, 1, v0')
        a(f'v_lshl_add_u32 v110, v118, 3, v110')
        a(f'v_lshrrev_b32 v118, 4, v0')
        a(f'v_lshl_add_u32 v118, v118, 3, v111')
        a(f'v_lshl_add_u32 v110, v118, 7, v110')
        a(f'v_add_u32 v{vXR}, {PHL}, v110')
        a(f'v_xor_b32 v110, 64, v110')
        a(f'v_add_u32 v{vXR+1}, {PHL+512}, v110')
        a(f'v_and_b32 v110, 1, v0')
        a(f'v_lshlrev_b32 v110, 1, v110')
        a(f'v_bfe_u32 v111, v0, 3, 1')
        a(f'v_xor_b32 v110, v110, v111')
        a(f'v_bfe_u32 v111, v0, 4, 1')
        a(f'v_xor_b32 v110, v110, v111')
        a(f'v_xor_b32 v110, s{sT}, v110')
        a(f'v_lshlrev_b32 v110, 4, v110')
        a(f'v_bfe_u32 v111, v0, 1, 1')
        a(f'v_lshl_add_u32 v110, v111, 3, v110')
        a(f'v_lshl_add_u32 v110, v118, 6, v110')
        a(f'v_add_u32 v{vXR+2}, {VVL}, v110')
        a(f'v_xor_b32 v110, 32, v110')
        a(f'v_add_u32 v{vXR+3}, {VVL+256}, v110')
        for j in range(4):
            a(f'v_mov_b32 v{AV+8+j}, v{vONE}')
        a(f'v_and_b32 v110, 15, v0')
        a(f'v_lshrrev_b32 v111, 4, v0')
        a(f'v_lshlrev_b32 v111, 4, v111')
        a(f'v_cmp_eq_u32 vcc, 0, v110')
        a(f'v_lshl_add_u32 v110, v110, 7, v111')
        a(f'v_add_u32 v111, 2048, v111')
        a(f'v_mov_b32 v118, 0x10000000')
        a(f'v_cndmask_b32 v111, v118, v111, vcc')
        a(f's_lshl_b32 s{sT+2}, s{sG1}, 4')
        a(f's_add_u32 s{sT+2}, s{sT+2}, s{sRB1}')
        a(f's_mul_i32 s{sT+2}, s{sT+2}, 4352')
        a(f's_mul_i32 s{sT}, s{sT}, 2176')
        a(f's_add_u32 s{sT+2}, s{sT+2}, s{sT}')
        a(f's_lshl_b32 s{sT+1}, s{sT+1}, 6')
        a(f's_add_u32 s{sT+2}, s{sT+2}, s{sT+1}')
        a(f's_add_u32 s{sT+2}, s{sT+2}, {KV_OFF}')
        a.wait_lg()
        a.barrier()
        for ks in range(4):
            b = WB + ks * 8
            a(f'ds_read_b64_tr_b16 v[{b}:{b+1}], v{vXR} offset:{ks*4096}')
            a(f'ds_read_b64_tr_b16 v[{b+2}:{b+3}], v{vXR+1} offset:{ks*4096}')
            a(f'ds_read_b64_tr_b16 v[{b+4}:{b+5}], v{vXR+2} offset:{ks*2048}')
            a(f'ds_read_b64_tr_b16 v[{b+6}:{b+7}], v{vXR+3} offset:{ks*2048}')
        for ks in range(4):
            b = WB + ks * 8
            a(f'v_mfma_f32_16x16x32_bf16 {R(AV)}, {R(b)}, {R(b+4)}, {"0" if ks == 0 else R(AV)}')
            a(f'v_mfma_f32_16x16x32_bf16 {R(AV+4)}, {R(b)}, {R(AV+8)}, {"0" if ks == 0 else R(AV+4)}')
        a(f'buffer_store_dwordx4 {R(AV)}, v110, s[{SWS}:{SWS+3}], s{sT+2} offen sc1')
        a(f'buffer_store_dwordx4 {R(AV+4)}, v111, s[{SWS}:{SWS+3}], s{sT+2} offen sc1')
        self.get_nonce()
        self.publish(0, sG1, sRB1)
        self.stamp()
        def qbuf(tl): return WB + (tl % 8) * 4
        for tl in range(4):
            for s in wfrag(tl, 2, qbuf(tl)): a(s)
        for tl in range(32):
            a(f'v_mfma_f32_32x32x16_bf16 {R(AQ,16)}, {R(qbuf(tl))}, {R(X0+tl*4)}, {"0" if tl == 0 else R(AQ,16)}')
            if tl + 4 < 32:
                for s in wfrag(tl + 4, 2, qbuf(tl + 4)): a(s)
            if tl & 3 == 0:
                for j in range(4): a(f'v_dot2c_f32_bf16 v{vCQ}, v{qbuf(tl)+j}, v{vONE}')
        a(f's_lshl_b32 s{sT}, s{sW}, 8')
        a(f'v_lshl_add_u32 v110, v0, 2, s{sT}')
        a(f'ds_write_b32 v110, v{vCQ} offset:1024')
        a(f'v_and_b32 v111, 31, v0')
        a(f'v_lshlrev_b32 v111, 2, v111')
        a(f'v_add_u32 v111, 1024, v111')
        a.wait_lg()
        a.barrier()
        for w in range(4):
            a(f'ds_read2_b32 v[{WB+2*w}:{WB+2*w+1}], v111 offset0:{w*64} offset1:{w*64+32}')
        a(f'v_pk_add_f32 v[{WB}:{WB+1}], v[{WB}:{WB+1}], v[{WB+2}:{WB+3}]')
        a(f'v_pk_add_f32 v[{WB+4}:{WB+5}], v[{WB+4}:{WB+5}], v[{WB+6}:{WB+7}]')
        a(f'v_pk_add_f32 v[{WB}:{WB+1}], v[{WB}:{WB+1}], v[{WB+4}:{WB+5}]')
        a(f'v_add_f32 v{WB}, v{WB}, v{WB+1}')
        self.cs_frag(WB, WB + 8, 118)
        a(f'v_mfma_f32_32x32x16_bf16 {R(AQ,16)}, {R(WB+8)}, {R(vNM)}, {R(AQ,16)}')
        self.prefetch_p2()
        for i in range(8):
            a(f'v_cvt_pk_bf16_f32 v{AQ+i}, v{AQ+2*i}, v{AQ+2*i+1}')
        for t in range(2):
            a(f'v_mfma_f32_32x32x16_bf16 {R(WB+16*t,16)}, {R(PH+4*t)}, {R(AQ+4*t)}, 0')
        for t in range(2):
            self.softmax(WB + 16 * t, vC2, AK + 8 * t, 118)
        a(f's_lshl_b32 s{sT+2}, s{sW}, 6')
        a(f'v_add_u32 v110, s{sT+2}, v0')
        a(f'v_lshrrev_b32 v111, 7, v110')
        a(f'v_and_b32 v110, 127, v110')
        a(f'v_mul_u32_u24 v{vXE}, 2176, v111')
        a(f'v_lshl_add_u32 v{vXE}, v110, 4, v{vXE}')
        KVB = 2048
        a(f'v_mul_u32_u24 v{vXR}, 1088, v111')
        a(f'v_lshl_add_u32 v{vXR}, v110, 3, v{vXR}')
        a(f's_lshl_b32 s{sT+2}, s{sW}, 2')
        a(f'v_lshrrev_b32 v110, 4, v0')
        a(f'v_add_u32 v110, s{sT+2}, v110')
        a(f'v_lshrrev_b32 v111, 3, v110')
        a(f'v_and_b32 v110, 7, v110')
        a(f'v_mul_u32_u24 v{vXO}, 2176, v111')
        a(f'v_lshl_add_u32 v{vXO}, v110, 4, v{vXO}')
        a(f'v_and_b32 v118, 15, v0')
        a(f'v_mul_u32_u24 v118, 4352, v118')
        a(f'v_add_u32 v{vXO}, v{vXO}, v118')
        a(f'v_mul_u32_u24 v{vXR+1}, 1088, v111')
        a(f'v_lshl_add_u32 v{vXR+1}, v110, 3, v{vXR+1}')
        a(f'v_and_b32 v110, 3, v0')
        a(f'v_bfe_u32 v111, v0, 2, 1')
        a(f'v_lshl_add_u32 v110, v111, 3, v110')
        a(f'v_bfe_u32 v111, v0, 4, 1')
        a(f'v_lshl_add_u32 v110, v111, 2, v110')
        a(f'v_and_b32 v111, 8, v0')
        a(f'v_cmp_eq_u32 vcc, 0, v111')
        a(f'v_lshrrev_b32 v111, 5, v0')
        a(f'v_lshlrev_b32 v111, 5, v111')
        a(f'v_cndmask_b32 v110, 16, v110, vcc')
        a(f'v_lshl_add_u32 v{vXR+2}, v110, 6, v111')
        a(f'v_lshlrev_b32 v{vXR+3}, 4, v0')
        self.stamp()
        self.wait_flags(0, sG1)
        self.stamp()
        a(f's_mul_i32 s{sT+2}, s{sG1}, {16*4352}')
        a(f's_add_u32 s{sT+2}, s{sT+2}, {KV_OFF}')
        a(f'buffer_load_dwordx4 {R(X0+64)}, v{vXO}, s[{SWS}:{SWS+3}], s{sT+2} offen offset:2048 sc1')
        for p in range(16):
            a(f'buffer_load_dwordx4 {R(X0+4*p)}, v{vXE}, s[{SWS}:{SWS+3}], s{sT+2} offen sc1')
            if p < 15:
                a(f's_add_u32 s{sT+2}, s{sT+2}, 4352')
        Z = X0 + 64
        for sh in (8, 4, 2, 1):
            for j in range(4):
                a(f'v_add_f32_dpp v{Z+j}, v{Z+j}, v{Z+j} row_ror:{sh} row_mask:0xf bank_mask:0xf')
        a(f'v_cvt_pk_bf16_f32 v{Z}, v{Z}, v{Z+1}')
        a(f'v_cvt_pk_bf16_f32 v{Z+1}, v{Z+2}, v{Z+3}')
        a(f'ds_write_b64 v{vXR+1}, v[{Z}:{Z+1}] offset:{KVB+1024}')
        for p in range(1, 16):
            a(f'v_pk_add_f32 v[{X0}:{X0+1}], v[{X0}:{X0+1}], v[{X0+4*p}:{X0+4*p+1}]')
            a(f'v_pk_add_f32 v[{X0+2}:{X0+3}], v[{X0+2}:{X0+3}], v[{X0+4*p+2}:{X0+4*p+3}]')
        a(f'v_cvt_pk_bf16_f32 v{X0}, v{X0}, v{X0+1}')
        a(f'v_cvt_pk_bf16_f32 v{X0+1}, v{X0+2}, v{X0+3}')
        a(f'ds_write_b64 v{vXR}, v[{X0}:{X0+1}] offset:{KVB}')
        a.wait_lg()
        a.barrier()
        for t in range(2):
            for u in range(2):
                a(f'ds_read_b128 {R(AV+8*t+4*u)}, v{vXR+2} offset:{KVB + t*1088 + u*16}')
        a(f's_lshl_b32 s{sT+2}, s{sRB1}, 2')
        a(f's_add_u32 s{sT+2}, s{sT+2}, s{sW}')
        a(f's_lshl_b32 s{sT+2}, s{sT+2}, 15')
        a(f's_lshl_b32 s{sT+3}, s{sG1}, 11')
        a(f's_add_u32 s{sT+2}, s{sT+2}, s{sT+3}')
        if O_OFF:
            a(f's_add_u32 s{sT+2}, s{sT+2}, {O_OFF}')
        for t in range(2):
            a(f'v_mfma_f32_32x32x16_bf16 {R(WB+16*t,16)}, {R(AV+8*t)}, {R(AK+8*t)}, 0')
            a(f'v_mfma_f32_32x32x16_bf16 {R(WB+16*t,16)}, {R(AV+8*t+4)}, {R(AK+8*t+4)}, {R(WB+16*t,16)}')
        for t in range(2):
            D = WB + 16 * t
            a(f'v_add_f32 v{D+4}, 0x358637bd, v{D+4}')
            a(f'v_rcp_f32 v{D+4}, v{D+4}')
            a(f'v_mov_b32 v{D+5}, v{D+4}')
            for r in (0, 2, 8, 10):
                a(f'v_pk_mul_f32 v[{D+r}:{D+r+1}], v[{D+r}:{D+r+1}], v[{D+4}:{D+5}]')
            for jj, r in enumerate((0, 2, 8, 10)):
                a(f'v_cvt_pk_bf16_f32 v{D+12+jj}, v{D+r}, v{D+r+1}')
            a(f'buffer_store_dwordx4 {R(D+12)}, v{vXR+3}, s[{SWS}:{SWS+3}], s{sT+2} offen offset:{t*1024} sc1')
        self.publish(1, sRB1, sG1)
        self.stamp()

    WO_L = 65536

    def w128_voff(self, v, t):
        a = self.a
        a(f'v_bfe_u32 v{t}, v0, 4, 1')
        a(f'v_lshlrev_b32 v{t}, 2, v{t}')
        a(f'v_and_b32 v{v}, 7, v0')
        a(f'v_xor_b32 v{v}, v{v}, v{t}')
        a(f'v_lshlrev_b32 v{v}, 4, v{v}')
        a(f'v_lshrrev_b32 v{t}, 3, v0')
        a(f'v_lshl_add_u32 v{v}, v{t}, 10, v{v}')

    def prefetch_p2(self):
        a = self.a
        self.w128_voff(3, 110)
        a(f's_and_b32 s{sT}, s{sM}, 7')
        a(f's_lshl_b32 s{sT}, s{sT}, 7')
        a(f's_lshl_b32 s{sT+1}, s{sW}, 13')
        a(f's_add_u32 s{sT+1}, s{sT+1}, s{sT}')
        a(f's_lshl_b32 s{sT+2}, s{sW}, 10')
        for n in range(16):
            a(f's_add_u32 s{sT+5}, s{sT+1}, {n*4*8192}')
            a(f's_add_u32 s{sT+6}, s{sT+2}, {self.WO_L + n*4096}')
            dma(a, 3, SWO, f's{sT+5}', f's{sT+6}', 'wo')
        self.tile_off()
        a(f'buffer_load_dwordx4 a[240:243], v110, s[{SX}:{SX+3}], s{sT+3} offen')
        a(f'buffer_load_dwordx4 a[244:247], v110, s[{SX}:{SX+3}], s{sT+3} offen offset:32')

    def tile_off(self):
        a = self.a
        a(f'v_and_b32 v110, 31, v0')
        a(f'v_lshlrev_b32 v110, 10, v110')
        a(f'v_lshrrev_b32 v111, 5, v0')
        a(f'v_lshl_add_u32 v110, v111, 4, v110')
        a(f's_lshr_b32 s{sT+3}, s{sM}, 3')
        a(f's_lshl_b32 s{sT+4}, s{sRB}, 1')
        a(f's_add_u32 s{sT+3}, s{sT+3}, s{sT+4}')
        a(f's_lshl_b32 s{sT+3}, s{sT+3}, 1')
        a(f's_and_b32 s{sT+4}, s{sW}, 1')
        a(f's_add_u32 s{sT+3}, s{sT+3}, s{sT+4}')
        a(f's_mov_b32 s76, s{sT+3}')
        a(f's_lshl_b32 s{sT+3}, s{sT+3}, 15')
        a(f's_and_b32 s{sT+4}, s{sM}, 7')
        a(f's_lshl_b32 s{sT+4}, s{sT+4}, 1')
        a(f's_lshr_b32 s{sT+5}, s{sW}, 1')
        a(f's_add_u32 s{sT+4}, s{sT+4}, s{sT+5}')
        a(f's_mov_b32 s77, s{sT+4}')
        a(f's_lshl_b32 s{sT+4}, s{sT+4}, 6')
        a(f's_add_u32 s{sT+3}, s{sT+3}, s{sT+4}')

    def w128_raddr(self, v, perm, sbase):
        a = self.a
        a(f'v_bfe_u32 v110, v0, 3, 1')
        a(f'v_lshlrev_b32 v110, 2, v110')
        a(f'v_bfe_u32 v111, v0, 4, 1')
        a(f'v_lshl_add_u32 v110, v111, 1, v110')
        a(f'v_bfe_u32 v111, v0, 1, 1')
        a(f'v_add_u32 v110, v110, v111')
        a(f'v_lshlrev_b32 v110, 4, v110')
        a(f'v_and_b32 v111, 1, v0')
        a(f'v_lshl_add_u32 v110, v111, 3, v110')
        a(f'v_bfe_u32 v111, v0, 2, 2')
        a(f'v_lshl_add_u32 v110, v111, 7, v110')
        a(f'v_lshrrev_b32 v111, 5, v0')
        a(f'v_lshl_add_u32 v110, v111, {9 if perm else 10}, v110')
        a(f'v_add_u32 v{v}, {sbase}, v110')
        a(f'v_xor_b32 v110, 64, v110')
        a(f'v_add_u32 v{v+1}, {sbase}, v110')

    def pair_reduce(self, A0, A1, T, lds):
        a = self.a
        L1, L2 = a.newlabel('PR'), a.newlabel('PR')
        a(f's_xor_b32 s{sT}, s{sW}, 2')
        a(f's_lshl_b32 s{sT}, s{sT}, 12')
        a(f's_add_u32 s{sT}, s{sT}, {lds}')
        a(f'v_lshl_add_u32 v110, v0, 4, s{sT}')
        a(f's_lshl_b32 s{sT}, s{sW}, 12')
        a(f's_add_u32 s{sT}, s{sT}, {lds}')
        a(f'v_lshl_add_u32 v111, v0, 4, s{sT}')
        a.nop(12)
        a(f's_cmp_ge_u32 s{sW}, 2')
        a(f's_cbranch_scc1 {L1}')
        sn = a.snapshot()
        for j in range(4):
            a(f'ds_write_b128 v110, {R(A1+4*j)} offset:{j*1024}')
        a(f's_branch {L2}')
        a.label(L1)
        a.restore(sn)
        for j in range(4):
            a(f'ds_write_b128 v110, {R(A0+4*j)} offset:{j*1024}')
        for j in range(16):
            a(f'v_mov_b32 v{A0+j}, v{A1+j}')
        a.label(L2)
        a.force_wait('lgkmcnt(0)')
        a.barrier()
        for j in range(4):
            a(f'ds_read_b128 {R(T+4*j)}, v111 offset:{j*1024}')
        for j in range(0, 16, 2):
            a(f'v_pk_add_f32 v[{A0+j}:{A0+j+1}], v[{A0+j}:{A0+j+1}], v[{T+j}:{T+j+1}]')

    def p2(self):
        a = self.a
        A0, A1, WB, XA = 16, 32, 64, 176
        vL16, vRA = 1, 4
        a(f'v_lshlrev_b32 v{vL16}, 4, v0')
        a(f's_lshr_b32 s{sT+5}, s{sW}, 1')
        a(f's_lshl_b32 s{sT+5}, s{sT+5}, 15')
        a(f's_add_u32 s{sT+5}, s{sT+5}, {self.WO_L}')
        self.w128_raddr(vRA, False, f's{sT+5}')
        a(f's_lshl_b32 s78, s76, 15')
        a(f's_lshr_b32 s{sT+5}, s{sW}, 1')
        a(f's_lshl_b32 s{sT+5}, s{sT+5}, 14')
        a(f's_add_u32 s78, s78, s{sT+5}')
        if O_OFF:
            a(f's_add_u32 s78, s78, {O_OFF}')
        self.wait_flags(1, sRB)
        self.stamp()
        for n in range(16):
            a(f'buffer_load_dwordx4 {R(XA+4*n,4,"a")}, v{vL16}, s[{SWS}:{SWS+3}], s78 offen offset:{(n&3)*1024} sc1')
            if n & 3 == 3 and n < 15:
                a(f's_add_u32 s78, s78, 4096')
        def wf(t, ct):
            d = WB + ((t % 4) * 2 + ct) * 4
            return d, [f'ds_read_b64_tr_b16 v[{d}:{d+1}], v{vRA+ct} offset:{t*2048}',
                       f'ds_read_b64_tr_b16 v[{d+2}:{d+3}], v{vRA+ct} offset:{t*2048+512}']
        for t in range(3):
            for ct in range(2):
                for s in wf(t, ct)[1]: a(s)
        for j in range(8):
            a(f'v_accvgpr_read_b32 v{96+j}, a{240+j}')
        for b in (96, 100):
            a(f'v_permlane32_swap_b32 v{b}, v{b+2}')
            a(f'v_permlane32_swap_b32 v{b+1}, v{b+3}')
        for t in range(16):
            for ct in range(2):
                acc = (A0, A1)[ct]
                a(f'v_mfma_f32_32x32x16_bf16 {R(acc,16)}, {R(wf(t,ct)[0])}, {R(XA+4*t,4,"a")}, {"0" if t == 0 else R(acc,16)}')
                if t + 3 < 16:
                    for s in wf(t + 3, ct)[1]: a(s)
        self.pair_reduce(A0, A1, WB, 0)
        for j in range(8):
            a(f'v_lshlrev_b32 v{A1+2*j}, 16, v{96+j}')
            a(f'v_and_b32 v{A1+2*j+1}, 0xffff0000, v{96+j}')
        for j in range(0, 16, 2):
            a(f'v_pk_add_f32 v[{A0+j}:{A0+j+1}], v[{A0+j}:{A0+j+1}], v[{A1+j}:{A1+j+1}]')
        for j in range(8):
            a(f'v_cvt_pk_bf16_f32 v{96+j}, v{A0+2*j}, v{A0+2*j+1}')
        a(f's_lshl_b32 s{sT+2}, s76, 15')
        a(f's_lshl_b32 s{sT+3}, s77, 11')
        a(f's_add_u32 s{sT+2}, s{sT+2}, s{sT+3}')
        a(f's_add_u32 s{sT+2}, s{sT+2}, {H_OFF}')
        a(f'buffer_store_dwordx4 {R(96)}, v{vL16}, s[{SWS}:{SWS+3}], s{sT+2} offen sc1')
        a(f'buffer_store_dwordx4 {R(100)}, v{vL16}, s[{SWS}:{SWS+3}], s{sT+2} offen offset:1024 sc1')
        a('v_mov_b32 v104, 0')
        a('v_mov_b32 v105, 0')
        for j in range(8):
            a(f'v_dot2c_f32_bf16 v104, v{96+j}, v109')
            a(f'v_dot2c_f32_bf16 v105, v{96+j}, v{96+j}')
        a('v_permlane32_swap_b32 v104, v105')
        a('v_add_f32 v104, v104, v105')
        a(f's_lshl_b32 s{sT+2}, s76, 12')
        a(f's_lshl_b32 s{sT+3}, s77, 8')
        a(f's_add_u32 s{sT+2}, s{sT+2}, s{sT+3}')
        a(f's_add_u32 s{sT+2}, s{sT+2}, {ST_OFF}')
        a('v_lshlrev_b32 v110, 2, v0')
        a(f'buffer_store_dword v104, v110, s[{SWS}:{SWS+3}], s{sT+2} offen sc1')
        for j in range(8):
            a(f'v_accvgpr_write_b32 a{240+j}, v{96+j}')
        self.publish(2, sRB, sM)
        self.stamp()

    def p3(self):
        a = self.a
        ACC, WB = 128, 16
        vL16, vD, vRA = 1, 2, 8
        CS = 96
        SL = 6208
        Lskip = a.newlabel('P3SKIP')
        a(f's_cmp_eq_u32 s{sM}, 15')
        a(f's_cbranch_scc1 {Lskip}')
        sn0 = a.snapshot()
        for e in range(3):
            a(f'v_add_u32 v110, {64*e}, v0')
            a(f'v_mul_u32_u24 v111, 43691, v110')
            a(f'v_lshrrev_b32 v111, 19, v111')
            a(f'v_mul_u32_u24 v112, 12, v111')
            a(f'v_sub_u32 v112, v110, v112')
            a(f'v_mul_u32_u24 v111, 2752, v111')
            a(f'v_lshl_add_u32 v{vD+e}, v112, 4, v111')
        a(f's_add_u32 s{sT}, s{sRB}, s{sM}')
        for gl in range(8):
            a(f's_add_u32 s{80+gl}, s{sT}, {gl}')
            a(f's_and_b32 s{80+gl}, s{80+gl}, 7')
        a(f's_mul_i32 s78, s{sM}, 192')
        a(f's_mul_i32 s{sT+1}, s{sW}, {16*2752}')
        a(f's_add_u32 s78, s78, s{sT+1}')
        a(f's_mul_i32 s79, s{sW}, {SL}')

        def wdma(gl):
            a(f's_mul_i32 s{sT+5}, s{80+gl}, {64*2752}')
            a(f's_add_u32 s{sT+5}, s{sT+5}, s78')
            for m in range(2):
                for e in range(3):
                    a(f's_add_u32 s{sT+6}, s79, {(gl % 6)*4*SL + m*3104 + e*1024}')
                    dma(a, vD + e, (SWG, SWU)[m], f's{sT+5}', f's{sT+6}', f'g{gl}')
        for gl in range(6):
            wdma(gl)
        a(f'v_bfe_u32 v110, v0, 4, 1')
        a(f'v_mul_u32_u24 v110, 3104, v110')
        a(f'v_lshrrev_b32 v111, 5, v0')
        a(f'v_bfe_u32 v112, v0, 2, 2')
        a(f'v_lshl_add_u32 v111, v111, 2, v112')
        a(f'v_mul_u32_u24 v111, 192, v111')
        a(f'v_add_u32 v110, v110, v111')
        a(f'v_and_b32 v111, 3, v0')
        a(f'v_lshl_add_u32 v110, v111, 3, v110')
        a(f's_lshl_b32 s{sT+2}, s{sRB}, 2')
        a(f's_add_u32 s{sT+2}, s{sT+2}, s{sW}')
        a(f's_lshl_b32 s{sT+3}, s{sT+2}, 15')
        a(f's_add_u32 s{sT+3}, s{sT+3}, {H_OFF}')
        for i in range(4):
            a(f's_add_u32 s{sT+5}, s{sW}, {i}')
            a(f's_and_b32 s{sT+5}, s{sT+5}, 3')
            a(f's_mul_i32 s{sT+6}, s{sT+5}, {SL}')
            a(f'v_add_u32 v{vRA+i}, s{sT+6}, v110')
            a(f's_lshl_b32 s{sT+5}, s{sT+5}, 10')
            a(f's_add_u32 s{88+i}, s{sT+3}, s{sT+5}')
        a(f's_lshl_b32 s73, s{sT+2}, 12')
        a(f's_add_u32 s73, s73, {ST_OFF}')
        a(f's_mul_i32 s74, s{sT+2}, 86')
        a(f's_mul_i32 s{sT+5}, s{sM}, 6')
        a(f's_add_u32 s74, s74, s{sT+5}')
        a(f's_lshl_b32 s74, s74, 10')
        a(f's_add_u32 s74, s74, {HH_OFF}')
        for u in range(6):
            a(f'v_mov_b32 v{CS+u}, 0')
        a('v_lshlrev_b32 v5, 2, v0')
        self.wait_flags(2, sRB)
        self.stamp()
        for tl in range(32):
            if tl & 3 == 0:
                a(f's_lshl_b32 s{sT+5}, s{80+(tl>>2)}, 12')
            a(f's_add_u32 s{sT+6}, s{sT+5}, s{88+(tl&3)}')
            a(f'buffer_load_dwordx4 {R(4*tl,4,"a")}, v{vL16}, s[{SWS}:{SWS+3}], s{sT+6} offen sc1')
        for c in range(16):
            a(f'buffer_load_dword v{64+c}, v5, s[{SWS}:{SWS+3}], s73 offen offset:{c*256} sc1')

        def wf(tl, u):
            d = WB + ((tl & 1) * 6 + u) * 4
            off = ((tl >> 2) & 1) * 4 * SL + u * 32
            return d, [f'ds_read_b64_tr_b16 v[{d}:{d+1}], v{vRA+(tl&3)} offset:{off}',
                       f'ds_read_b64_tr_b16 v[{d+2}:{d+3}], v{vRA+(tl&3)} offset:{off+1536}']
        for ch in range(4):
            a.wait_vm([f'g{2*ch}', f'g{2*ch+1}'])
            a.barrier()
            if ch == 1:
                wdma(6); wdma(7)
            if ch > 0:
                d = 8 * SL if ch < 3 else -16 * SL
                for i in range(4):
                    a(f'v_add_u32 v{vRA+i}, {d}, v{vRA+i}')
            t0 = ch * 8
            for u in range(6):
                for s in wf(t0, u)[1]: a(s)
            for tl in range(t0, t0 + 8):
                for u in range(6):
                    acc = ACC + 16 * u
                    a(f'v_mfma_f32_32x32x16_bf16 {R(acc,16)}, {R(wf(tl,u)[0])}, {R(4*tl,4,"a")}, {"0" if tl == 0 else R(acc,16)}')
                    if tl + 1 < t0 + 8:
                        for s in wf(tl + 1, u)[1]: a(s)
                    if tl & 3 == 0:
                        for j in range(4): a(f'v_dot2c_f32_bf16 v{CS+u}, v{wf(tl,u)[0]+j}, v109')
            a.wait_lg()
        self.stamp()
        SC = 24 * SL
        for p in range(3):
            a(f'v_permlane32_swap_b32 v{CS+2*p}, v{CS+2*p+1}')
            a(f'v_add_f32 v{CS+2*p}, v{CS+2*p}, v{CS+2*p+1}')
        a(f's_mul_i32 s{sT}, s{sW}, 256')
        a(f's_add_u32 s{sT}, s{sT}, {SC}')
        a(f'v_lshl_add_u32 v110, v0, 2, s{sT}')
        for p in range(3):
            a(f'ds_write_b32 v110, v{CS+2*p} offset:{p*1024}')
        for c in range(0, 16, 4):
            a(f'v_pk_add_f32 v[{64+c}:{65+c}], v[{64+c}:{65+c}], v[{66+c}:{67+c}]')
        a('v_pk_add_f32 v[64:65], v[64:65], v[68:69]')
        a('v_pk_add_f32 v[72:73], v[72:73], v[76:77]')
        a('v_pk_add_f32 v[64:65], v[64:65], v[72:73]')
        a('v_add_f32 v104, v64, v65')
        a('v_mov_b32 v105, v104')
        a('v_permlane32_swap_b32 v104, v105')
        a.wait_lg()
        a.barrier()
        a(f'v_and_b32 v111, 31, v0')
        a(f'v_lshlrev_b32 v111, 2, v111')
        for p in range(3):
            a(f'v_add_u32 v110, {SC + p*1024}, v111')
            for w in range(4):
                a(f'ds_read2_b32 v[{WB+8*p+2*w}:{WB+8*p+2*w+1}], v110 offset0:{w*64} offset1:{w*64+32}')
        self.ln_stats(104, 105, 112, 116, 118)
        a('v_mul_f32 v116, v116, v116')
        a('v_mov_b32 v117, v116')
        for p in range(3):
            b = WB + 8 * p
            a(f'v_pk_add_f32 v[{b}:{b+1}], v[{b}:{b+1}], v[{b+2}:{b+3}]')
            a(f'v_pk_add_f32 v[{b+4}:{b+5}], v[{b+4}:{b+5}], v[{b+6}:{b+7}]')
            a(f'v_pk_add_f32 v[{b}:{b+1}], v[{b}:{b+1}], v[{b+4}:{b+5}]')
        for u in range(6):
            self.cs_frag(WB + 8 * (u >> 1) + (u & 1), 64 + 4 * u, 118)
            acc = ACC + 16 * u
            a(f'v_mfma_f32_32x32x16_bf16 {R(acc,16)}, {R(64+4*u)}, {R(112)}, {R(acc,16)}')
        Lst = a.newlabel('P3ST')
        for u in range(6):
            acc = ACC + 16 * u
            if u == 2:
                a(f's_cmp_eq_u32 s{sM}, 14')
                a(f's_cbranch_scc1 {Lst}')
            if u == 4:
                a('s_add_u32 s74, s74, 4096')
            for j in range(0, 8, 2):
                a(f'v_pk_mul_f32 v[{acc+j}:{acc+j+1}], v[{acc+j}:{acc+j+1}], v[116:117]')
            for j in range(0, 8, 2):
                a(f'v_pk_mul_f32 v[{acc+j}:{acc+j+1}], v[{acc+j}:{acc+j+1}], v[{acc+8+j}:{acc+9+j}]')
            for j in range(4):
                a(f'v_cvt_pk_bf16_f32 v{acc+8+j}, v{acc+2*j}, v{acc+2*j+1}')
            a(f'buffer_store_dwordx4 {R(acc+8)}, v{vL16}, s[{SWS}:{SWS+3}], s74 offen offset:{(u&3)*1024} sc1')
        a.label(Lst)
        a.nop(12)
        self.publish(3, sRB, sM)
        a.label(Lskip)
        a.force_wait('vmcnt(0) lgkmcnt(0)')
        self.stamp()

    def p4(self):
        a = self.a
        A0, A1, WB = 16, 32, 64
        vL16, vD, vRA = 1, 3, 4
        HALF = 80 * 1024
        self.w128_voff(vD, 110)
        a(f's_and_b32 s{sT}, s{sM}, 7')
        a(f's_lshl_b32 s{sT}, s{sT}, 7')
        a(f's_lshr_b32 s{sT+1}, s{sW}, 1')
        a(f's_and_b32 s{sT+2}, s{sW}, 1')
        a(f's_mul_i32 s78, s{sT+1}, {86*8192}')
        a(f's_add_u32 s78, s78, s{sT}')
        a(f's_lshl_b32 s{sT+3}, s{sT+2}, 13')
        a(f's_add_u32 s78, s78, s{sT+3}')
        a(f's_mul_i32 s80, s{sT+1}, {HALF}')
        a(f's_lshl_b32 s{sT+3}, s{sT+2}, 10')
        a(f's_add_u32 s79, s80, s{sT+3}')

        def wdma(t):
            a(f's_add_u32 s{sT+5}, s78, {t*16384}')
            a(f's_add_u32 s{sT+6}, s79, {(t % 40)*2048}')
            dma(a, vD, SWD, f's{sT+5}', f's{sT+6}', f'd{t//8}')
        for t in range(40):
            wdma(t)
        self.w128_raddr(vRA, True, 's80')
        a(f'v_add_u32 v{vRA+2}, {20*2048}, v{vRA}')
        a(f'v_add_u32 v{vRA+3}, {20*2048}, v{vRA+1}')
        a(f's_mul_i32 s81, s76, 86')
        a(f's_mul_i32 s{sT+3}, s{sT+1}, 43')
        a(f's_add_u32 s81, s81, s{sT+3}')
        a(f's_lshl_b32 s81, s81, 10')
        a(f's_add_u32 s81, s81, {HH_OFF}')
        self.wait_flags(3, sRB, 15)
        self.stamp()
        for n in range(43):
            a(f'buffer_load_dwordx4 {R(4*n,4,"a")}, v{vL16}, s[{SWS}:{SWS+3}], s81 offen offset:{(n&3)*1024} sc1')
            if n & 3 == 3:
                a(f's_add_u32 s81, s81, 4096')
        def wf(t, ct):
            d = WB + ((t % 4) * 2 + ct) * 4
            sl = t % 40
            base = vRA + ct + (2 if sl >= 20 else 0)
            off = (sl % 20) * 2048
            return d, [f'ds_read_b64_tr_b16 v[{d}:{d+1}], v{base} offset:{off}',
                       f'ds_read_b64_tr_b16 v[{d+2}:{d+3}], v{base} offset:{off+1024}']
        chunks = [(0, 8), (8, 40), (40, 43)]
        for ci, (t0, t1) in enumerate(chunks):
            a.wait_vm([f'd{x}' for x in range(t0 // 8, (t1 + 7) // 8)])
            a.barrier()
            if ci == 1:
                for t in range(40, 43): wdma(t)
            for t in range(t0, min(t0 + 3, t1)):
                for ct in range(2):
                    for s in wf(t, ct)[1]: a(s)
            for t in range(t0, t1):
                for ct in range(2):
                    acc = (A0, A1)[ct]
                    a(f'v_mfma_f32_32x32x16_bf16 {R(acc,16)}, {R(wf(t,ct)[0])}, {R(4*t,4,"a")}, {"0" if t == 0 else R(acc,16)}')
                    if t + 3 < t1:
                        for s in wf(t + 3, ct)[1]: a(s)
            a.wait_lg()
        self.stamp()
        self.pair_reduce(A0, A1, WB, 32768)
        for j in range(8):
            a(f'v_accvgpr_read_b32 v{96+j}, a{240+j}')
        for j in range(8):
            a(f'v_lshlrev_b32 v{A1+2*j}, 16, v{96+j}')
            a(f'v_and_b32 v{A1+2*j+1}, 0xffff0000, v{96+j}')
        for j in range(0, 16, 2):
            a(f'v_pk_add_f32 v[{A0+j}:{A0+j+1}], v[{A0+j}:{A0+j+1}], v[{A1+j}:{A1+j+1}]')
        for j in range(8):
            a(f'v_cvt_pk_bf16_f32 v{96+j}, v{A0+2*j}, v{A0+2*j+1}')
        self.tile_off()
        for b in (96, 100):
            a(f'v_permlane32_swap_b32 v{b}, v{b+2}')
            a(f'v_permlane32_swap_b32 v{b+1}, v{b+3}')
        a(f'buffer_store_dwordx4 {R(96)}, v110, s[{SOUT}:{SOUT+3}], s{sT+3} offen')
        a(f'buffer_store_dwordx4 {R(100)}, v110, s[{SOUT}:{SOUT+3}], s{sT+3} offen offset:32')
        self.stamp()

    def build(self):
        a = self.a
        hdr = open('sequential_preLN__linear_kernel_hedgehog__glu_gated_bilinear__prompt.s.ref').read().split('\n')
        for l in hdr:
            if l.startswith('; @launch'):
                a.raw('; @launch grid=(256,1,1) block=(256,1,1) lds=163840')
                break
            a.raw(l)
        a.raw('.amdgcn_target "amdgcn-amd-amdhsa--gfx950"')
        a.raw('.text')
        a.raw(f'.globl {NAME}')
        a.raw('.p2align 8')
        a.raw(f'.type {NAME},@function')
        a.raw(f'{NAME}:')
        self.prologue()
        self.stamp()
        self.p1()
        if self.stop >= 2: self.p2()
        if self.stop >= 3: self.p3()
        if self.stop >= 4: self.p4()
        a.label('L_end')
        a.raw('s_endpgm')
        a.raw('.section .rodata,"a"')
        a.raw('.p2align 6')
        a.raw(f'.amdhsa_kernel {NAME}')
        a.raw('  .amdhsa_next_free_vgpr 512')
        a.raw('  .amdhsa_next_free_sgpr 102')
        a.raw('  .amdhsa_accum_offset 256')
        a.raw('  .amdhsa_group_segment_fixed_size 0')
        a.raw('  .amdhsa_kernarg_size 88')
        a.raw('  .amdhsa_user_sgpr_count 2')
        a.raw('  .amdhsa_user_sgpr_kernarg_segment_ptr 1')
        a.raw('  .amdhsa_system_sgpr_workgroup_id_x 1')
        a.raw('.end_amdhsa_kernel')
        return a.text()


if __name__ == '__main__':
    out = sys.argv[1]
    ts = 'ts' in sys.argv[2:]
    if 'dbg' in sys.argv[2:]: ts = 'dbg'
    k = K(ts=ts)
    k.tswg = int(sys.argv[-1]) if ts == 'dbg' else 0
    t = k.build()
    open(out, 'w').write(t)
    print(len(t), 'bytes', k.a.stats, 'nops', k.a.nops)
```
